```python
import torch

def _softmax(x, axis=-1):
    return torch.softmax(x, dim=axis)
def _gelu(x):
    return torch.nn.functional.gelu(x, approximate="tanh")
def _silu(x):
    return torch.nn.functional.silu(x)
def _sigmoid(x):
    return torch.sigmoid(x)
def _layernorm(x, axis=-1, eps=1e-5):
    m = x.mean(dim=axis, keepdim=True)
    v = x.var(dim=axis, keepdim=True, unbiased=False)
    return (x - m) / torch.sqrt(v + eps)
def _scatter_add(tgt, idx, src, axis=0):
    return tgt.clone().index_add_(axis, idx, src)
def _segment_sum(src, seg, n):
    out = torch.zeros((n,) + src.shape[1:], dtype=src.dtype)
    return out.index_add_(0, seg, src)
def _pad(x, pw):
    flat = tuple(v for pair in reversed(pw) for v in pair)
    return torch.nn.functional.pad(x, flat)

kernel_name = 'standalone__grouped_kv_mqa__prompt'

def setup_inputs():

    _w = (lambda a: (lambda t: t.to(torch.bfloat16) if t.is_floating_point() else t)(torch.as_tensor(a)))
    B, S, D, H = 1, 2048, 1024, 32
    Dh = D // H
    return {
        "x": _w((lambda *s: torch.randn(*s, dtype=torch.bfloat16) * 0.05)(B, S, D)),
        "wq": _w((lambda *s: torch.randn(*s, dtype=torch.bfloat16) * 0.8)(D, H * Dh)),
        "wk": _w((lambda *s: torch.randn(*s, dtype=torch.bfloat16) * 0.8)(D, Dh)),
        "wv": _w((lambda *s: torch.randn(*s, dtype=torch.bfloat16) * 0.05)(D, Dh)),
        "wo": _w((lambda *s: torch.randn(*s, dtype=torch.bfloat16) * 0.05)(H * Dh, D)),
    }

def reference(x, wq, wk, wv, wo):
    B, S, D = x.shape
    H = 32
    Dh = D // H
    q = (lambda x, *d: x.permute(*d))((x @ wq).reshape(B, S, H, Dh), 0, 2, 1, 3)
    k = x @ wk
    v = x @ wv
    scores = torch.einsum("bhqd,bkd->bhqk", q, k) * (Dh ** -0.5)
    p = _softmax(scores, axis=-1)
    o = torch.einsum("bhqk,bkd->bhqd", p, v)
    return (lambda x, *d: x.permute(*d))(o, 0, 2, 1, 3).reshape(B, S, H * Dh) @ wo
```

```python
import re

TRANS = ("v_exp_f32", "v_log_f32", "v_rcp_f32", "v_rsq_f32", "v_sqrt_f32")


def R(a, n=1, p="v"):
    return f"{p}{a}" if n == 1 else f"{p}[{a}:{a + n - 1}]"


def regs_of(op):
    op = op.strip()
    op = op.lstrip("-")
    m = re.fullmatch(r"abs\((.*)\)", op) or re.fullmatch(r"\|(.*)\|", op)
    if m:
        op = m.group(1)
    m = re.fullmatch(r"([vas])(\d+)", op)
    if m:
        return {(m.group(1), int(m.group(2)))}
    m = re.fullmatch(r"([vas])\[(\d+):(\d+)\]", op)
    if m:
        return {(m.group(1), i) for i in range(int(m.group(2)), int(m.group(3)) + 1)}
    if op == "vcc":
        return {("s", "vcc")}
    if op == "m0":
        return {("s", "m0")}
    if op == "exec":
        return {("s", "exec")}
    return set()


class Inst:
    def __init__(self, text):
        self.text = text
        t = text.split(";")[0].strip()
        self.label = t.endswith(":")
        self.directive = t.startswith(".")
        self.op = ""
        self.w = set()
        self.r = set()
        self.srcc = set()
        self.ab = set()
        self.data = set()
        self.states = 1
        self.kind = "other"
        self.passes = 0
        if not t or self.label or self.directive:
            self.states = 0
            self.kind = "none"
            return
        parts = t.split(None, 1)
        self.op = op = parts[0]
        rest = parts[1] if len(parts) > 1 else ""
        ops = [o.strip() for o in rest.split(",")] if rest else []
        if ops:
            last = ops[-1].split()
            self.mods = last[1:]
            ops[-1] = last[0] if last else ""
        else:
            self.mods = []
        self.ops = ops
        g = [regs_of(o) for o in ops]
        if op == "s_nop":
            self.states = int(ops[0], 0) + 1
            self.kind = "nop"
        elif op.startswith("v_mfma") or op.startswith("v_smfmac"):
            self.kind = "mfma"
            self.passes = 8 if "32x32" in op else 4
            self.w = g[0]
            self.ab = g[1] | g[2]
            if op.startswith("v_smfmac"):
                self.ab |= g[3]
                self.srcc = g[0]
            else:
                self.srcc = g[3]
            self.r = self.ab | self.srcc
        elif op.startswith("v_cmp"):
            self.kind = "valu"
            self.w = g[0]
            self.r = set().union(*g[1:])
        elif op.startswith("v_permlane"):
            self.kind = "valu"
            self.w = g[0] | g[1]
            self.r = g[0] | g[1]
        elif op.startswith("v_"):
            self.kind = "valu"
            self.w = g[0]
            self.r = set().union(*g[1:]) if len(g) > 1 else set()
            if op.startswith(("v_fmac", "v_pk_fmac")):
                self.r |= g[0]
            if op.startswith(("v_add_co", "v_addc_co", "v_sub_co")):
                self.w |= g[1]
        elif op.startswith("ds_read"):
            self.kind = "ds"
            self.w = g[0]
            self.r = g[1]
        elif op.startswith("ds_write"):
            self.kind = "ds"
            self.r = set().union(*g)
        elif op.startswith("buffer_load") or op.startswith("global_load"):
            self.kind = "vmem"
            if "lds" in self.mods or "_lds_" in op:
                self.r = set().union(*g) | {("s", "m0")}
            else:
                self.w = g[0]
                self.r = set().union(*g[1:])
        elif op.startswith(("buffer_store", "buffer_atomic")):
            self.kind = "vmem"
            self.r = set().union(*g)
            if op.endswith(("x3", "x4")):
                self.data = g[0]
        elif op.startswith("s_"):
            self.kind = "salu"
            if op.startswith(("s_cmp", "s_cbranch", "s_branch", "s_waitcnt", "s_barrier", "s_endpgm", "s_setprio", "s_bitcmp")):
                self.r = set().union(*g) if g else set()
            else:
                self.w = g[0] if g else set()
                self.r = set().union(*g[1:]) if len(g) > 1 else set()


def need(p, c):
    n = 0
    vw = {x for x in p.w if x[0] in "va"}
    sw = {x for x in p.w if x[0] == "s"}
    if p.kind == "valu":
        if c.kind == "mfma" and vw & c.r:
            n = max(n, 2)
        if c.op.startswith("v_permlane") and vw & c.r:
            n = max(n, 2)
        if c.op.startswith(("v_readfirstlane", "v_readlane")) and vw & c.r:
            n = max(n, 1)
        if p.op.startswith(TRANS) and c.kind == "valu" and not c.op.startswith(TRANS) and vw & c.r:
            n = max(n, 1)
        if c.kind == "vmem" and sw & c.r:
            n = max(n, 5)
        if c.kind == "valu" and sw & c.r:
            n = max(n, 2)
        if "dpp" in c.text and c.kind == "valu" and vw & c.r:
            n = max(n, 2)
    if p.kind == "salu" and ("s", "m0") in p.w and c.kind == "vmem" and ("s", "m0") in c.r:
        n = max(n, 1)
    if p.kind == "mfma":
        big = p.passes == 8
        if c.kind == "mfma":
            if p.w & c.ab:
                n = max(n, 12 if big else 8)
            if p.w & c.srcc and not (p.w == c.srcc and p.passes == c.passes):
                n = max(n, 10 if big else 6)
        elif c.kind in ("valu", "ds", "vmem"):
            if p.w & (c.r | c.w):
                n = max(n, 12 if big else 8)
            if c.kind == "valu" and p.srcc & c.w:
                n = max(n, 7 if big else 3)
    if p.kind == "vmem" and p.data and (p.data & c.w):
        n = max(n, 2)
    return n


class Asm:
    def __init__(self):
        self.lines = []

    def __call__(self, text):
        for ln in text.split("\n"):
            if ln.strip():
                self.lines.append(ln.strip())

    def label(self, name):
        self.lines.append(name + ":")

    def text(self):
        out = []
        for ln in self.lines:
            t = ln.split(";")[0].strip()
            out.append(ln if (t.endswith(":") or t.startswith(".")) else "    " + ln)
        return "\n".join(out) + "\n"

    def check(self, window=24):
        ins = [Inst(l) for l in self.lines]
        bad = []
        for i, c in enumerate(ins):
            if c.kind == "none":
                continue
            dist = 0
            for j in range(i - 1, max(-1, i - 1 - 4 * window), -1):
                p = ins[j]
                if p.op in ("s_branch", "s_endpgm"):
                    break
                if p.kind != "none":
                    n = need(p, c)
                    if n > dist:
                        bad.append((j, i, n, dist, p.text, c.text))
                dist += p.states
                if dist >= window:
                    break
        return bad
```

```python
import sys, math, struct, os
sys.path.insert(0, os.path.dirname(os.path.abspath(__file__)))
from asmlib import Asm, R

NAME = "standalone__grouped_kv_mqa__prompt_kernel"


def f2u(x):
    return struct.unpack("<I", struct.pack("<f", x))[0]


DEFAULTS = dict(
    diag=False,
    mode="A",
    rot_h=1, rot_r=8,
    force_fb=False,
    poll_it=7, kv_it=12,
    la=12,
)

S_X, S_WQ, S_WK, S_WV, S_WO, S_OUT, S_DBG, S_WS = 4, 6, 8, 10, 12, 14, 16, 18
D_X, D_WQ, D_WKV, D_WO, D_OUT, D_DBG, D_WS = 20, 24, 28, 32, 36, 40, 44
sW, sXCD, sIDX, sRB, sHP, sKEY16, sMAT, sROT = 48, 49, 50, 51, 52, 53, 54, 55
sT0, sT1, sT2, sT3 = 56, 57, 58, 59
sXB, sWB, sM0X, sM0W = 60, 61, 62, 63
sKVST, sFLAG, sOOWN, sOROW, sOUTB = 64, 65, 66, 67, 68
sSO, sSPIN, sKVW, sWOB, sWOM, sG = 69, 70, 71, 72, 73, 74
sORB, sOCB, sGROT, sSCALE, sCNT = 75, 76, 77, 78, 79
sPC = 80
sST = 84

vLANE, vL16 = 0, 1
vT = [2, 3, 4, 5]
vQX = [6, 7, 8, 9]
vQW = [10, 11]
vKRX = [12, 13]
vKRW = 14
vPOLL = 15
vRX = [176, 177, 178, 179]
vRW = [180, 181]
vRED = 182
vL4 = 183
vFLAG = 184
vONE = 185
vPOIS = 188
vDUMMY = 255
vS = [16, 32]
vC = [48, 64]
vQ = [80, 88]
vKVB = [96, 112]
vONES = 128
vIDX = 132
vAB = [133, 134, 135]
vO = [136, 152]
vL = [168, 172]
vWO = 192
vWR = [6, 7, 8, 9]
vOUT = 10
vMX = 11
vACC = [16, 32]
vRING = 48
aWF = 0

LDS_BYTES = 160 * 1024
SLOT = 24576
RED = 6 * SLOT
OBUF = 1 << 20
STAMP = 8 << 20


def srd(a, d, p, size):
    a(f"s_mov_b32 s{d}, s{p}")
    a(f"s_mov_b32 s{d+1}, s{p+1}")
    a(f"s_mov_b32 s{d+2}, {size}")
    a(f"s_mov_b32 s{d+3}, 0x20000")


def D(d):
    return f"s[{d}:{d+3}]"


def gen(**kw):
    P = dict(DEFAULTS)
    P.update(kw)
    a = Asm()
    nstamp = [0]

    def stamp():
        if P["diag"]:
            i = nstamp[0]
            nstamp[0] += 1
            a(f"s_memrealtime s[{sST+2*i}:{sST+2*i+1}]")
            a("s_waitcnt lgkmcnt(0)")

    a("s_cmp_ge_u32 s2, 256")
    a("s_cbranch_scc1 L_end")
    a("s_load_dwordx16 s[4:19], s[0:1], 0")
    if P["diag"]:
        a(f"s_memrealtime s[{sST}:{sST+1}]")
        nstamp[0] = 1
    a(f"s_getpc_b64 s[{sPC}:{sPC+1}]")
    a.label("L_pc")
    a(f"v_lshrrev_b32 v2, 6, v0")
    a(f"s_and_b32 s{sXCD}, s2, 7")
    a(f"v_readfirstlane_b32 s{sW}, v2")
    a(f"s_lshr_b32 s{sIDX}, s2, 3")
    a(f"v_lshrrev_b32 v3, 5, v0")
    a(f"s_lshl_b32 s{sT0}, s{sIDX}, 3")
    a(f"v_add_u32 v3, s{sT0}, v3")
    a(f"v_lshlrev_b32 v3, 7, v3")
    a(f"v_min_u32 v3, L_end-L_pc, v3")
    a(f"global_load_dword v{vDUMMY}, v3, s[{sPC}:{sPC+1}]")
    a(f"v_and_b32 v{vLANE}, 63, v0")
    a(f"v_lshlrev_b32 v{vL16}, 4, v{vLANE}")
    a(f"s_lshr_b32 s{sT0}, s{sIDX}, 1")
    a(f"s_lshl_b32 s{sKEY16}, s{sXCD}, 4")
    a(f"s_add_u32 s{sKEY16}, s{sKEY16}, s{sT0}")
    a(f"s_and_b32 s{sMAT}, s{sIDX}, 1")
    a(f"v_lshrrev_b32 v2, 3, v{vLANE}")
    a(f"v_lshrrev_b32 v3, 4, v{vLANE}")
    a(f"v_and_b32 v4, 7, v{vLANE}")
    a(f"v_xor_b32 v5, v4, v3")
    a(f"v_lshlrev_b32 v2, 11, v2")
    a(f"v_lshl_add_u32 v{vQX[0]}, v5, 4, v2")
    a(f"v_xor_b32 v{vQX[1]}, 64, v{vQX[0]}")
    a(f"v_add_u32 v{vQX[1]}, {8*2048-1024}, v{vQX[1]}")
    a(f"s_mul_i32 s{sT1}, s{sW}, {SLOT}")
    a(f"s_add_u32 s{sT1}, s{sT1}, {2*SLOT}")
    a(f"s_lshl_b32 s{sT2}, s{sKEY16}, 15")
    a(f"s_lshl_b32 s{sT3}, s{sW}, 9")
    a(f"s_add_u32 s{sT2}, s{sT2}, s{sT3}")
    a(f"s_lshl_b32 s{sT3}, s{sW}, 14")
    a("s_waitcnt lgkmcnt(0)")
    srd(a, D_X, S_X, 2048 * 2048)
    a(f"s_cmp_eq_u32 s{sMAT}, 0")
    a(f"s_cselect_b32 s{D_WKV}, s{S_WK}, s{S_WV}")
    a(f"s_cselect_b32 s{D_WKV+1}, s{S_WK+1}, s{S_WV+1}")
    a(f"s_mov_b32 s{D_WKV+2}, 65536")
    a(f"s_mov_b32 s{D_WKV+3}, 0x20000")
    vm = ["pf"]

    def vmwait(name, extra=""):
        i = max(k for k, n in enumerate(vm) if n == name)
        n = len(vm) - 1 - i
        assert n <= 63
        a(f"s_waitcnt vmcnt({n}){extra}")
        del vm[: i + 1]

    for q in range(4):
        a(f"s_add_u32 m0, s{sT1}, {q*2048}")
        a(f"s_add_u32 s{sSO}, s{sT2}, {q*128}")
        for j in range(2):
            a(f"buffer_load_dwordx4 v{vQX[j]}, {D(D_X)}, s{sSO} offen offset:{j*1024} lds")
            vm.append(f"kv{q}")
        a(f"s_add_u32 m0, s{sT1}, {8192+q*4096}")
        a(f"s_add_u32 s{sSO}, s{sT3}, {q*4096}")
        for j in range(4):
            a(f"buffer_load_dwordx4 v{vL16}, {D(D_WKV)}, s{sSO} offen offset:{j*1024} lds")
            vm.append(f"kv{q}")
    if P["mode"] == "A":
        a(f"s_lshr_b32 s{sT0}, s{sIDX}, 4")
        a(f"s_lshl_b32 s{sRB}, s{sXCD}, 1")
        a(f"s_add_u32 s{sRB}, s{sRB}, s{sT0}")
        a(f"s_and_b32 s{sHP}, s{sIDX}, 15")
    else:
        a(f"s_lshr_b32 s{sT0}, s{sIDX}, 3")
        a(f"s_lshr_b32 s{sRB}, s{sXCD}, 1")
        a(f"s_lshl_b32 s{sRB}, s{sRB}, 2")
        a(f"s_add_u32 s{sRB}, s{sRB}, s{sT0}")
        a(f"s_and_b32 s{sHP}, s{sXCD}, 1")
        a(f"s_lshl_b32 s{sHP}, s{sHP}, 3")
        a(f"s_and_b32 s{sT0}, s{sIDX}, 7")
        a(f"s_add_u32 s{sHP}, s{sHP}, s{sT0}")
    a(f"s_mul_i32 s{sROT}, s{sHP}, {P['rot_h']}")
    a(f"s_mul_i32 s{sT0}, s{sRB}, {P['rot_r']}")
    a(f"s_add_u32 s{sROT}, s{sROT}, s{sT0}")
    srd(a, D_WQ, S_WQ, 1024 * 2048)
    a(f"v_add_u32 v{vQX[2]}, {16*2048-2048}, v{vQX[0]}")
    a(f"v_add_u32 v{vQX[3]}, {16*2048-2048}, v{vQX[1]}")
    a(f"v_and_b32 v5, 1, v3")
    a(f"v_lshlrev_b32 v5, 2, v5")
    a(f"v_xor_b32 v5, v4, v5")
    a(f"v_lshl_add_u32 v{vQW[0]}, v5, 4, v2")
    a(f"v_add_u32 v{vQW[1]}, {8*2048-1024}, v{vQW[0]}")
    a(f"v_and_b32 v5, 1, v3")
    a(f"v_lshlrev_b32 v5, 1, v5")
    a(f"v_xor_b32 v5, v4, v5")
    a(f"v_lshl_add_u32 v{vWO}, v5, 4, v2")
    a(f"s_lshl_b32 s{sXB}, s{sRB}, 2")
    a(f"s_add_u32 s{sXB}, s{sXB}, s{sW}")
    a(f"s_lshl_b32 s{sXB}, s{sXB}, 16")
    a(f"s_lshl_b32 s{sWB}, s{sW}, 15")
    a(f"s_lshl_b32 s{sT0}, s{sHP}, 7")
    a(f"s_add_u32 s{sWB}, s{sWB}, s{sT0}")
    a(f"s_lshl_b32 s{sM0X}, s{sW}, 12")
    a(f"s_lshl_b32 s{sM0W}, s{sW}, 11")
    a(f"s_add_u32 s{sM0W}, s{sM0W}, 16384")

    def q_dma_list(ks):
        slot = (ks % 6) * SLOT
        L = []
        L.append([f"s_add_u32 s{sT0}, s{sROT}, {ks}", f"s_and_b32 s{sT0}, s{sT0}, 15",
                  f"s_lshl_b32 s{sSO}, s{sT0}, 7", f"s_add_u32 m0, s{sM0X}, {slot}",
                  f"s_add_u32 s{sSO}, s{sSO}, s{sXB}",
                  f"buffer_load_dwordx4 v{vQX[0]}, {D(D_X)}, s{sSO} offen lds"])
        for j in range(1, 4):
            L.append([f"buffer_load_dwordx4 v{vQX[j]}, {D(D_X)}, s{sSO} offen offset:{j*1024} lds"])
        L.append([f"s_lshl_b32 s{sSO}, s{sT0}, 17", f"s_add_u32 m0, s{sM0W}, {slot}",
                  f"s_add_u32 s{sSO}, s{sSO}, s{sWB}",
                  f"buffer_load_dwordx4 v{vQW[0]}, {D(D_WQ)}, s{sSO} offen lds"])
        L.append([f"buffer_load_dwordx4 v{vQW[1]}, {D(D_WQ)}, s{sSO} offen offset:1024 lds"])
        return L

    def q_dma(ks):
        for grp in q_dma_list(ks):
            for t in grp:
                a(t)
            vm.append(f"q{ks}")

    q_dma(0)
    q_dma(1)
    srd(a, D_WS, S_WS, 16 << 20)
    srd(a, D_DBG, S_DBG, 256)
    srd(a, D_WO, S_WO, 1024 * 2048)
    srd(a, D_OUT, S_OUT, 2048 * 2048)
    a(f"s_mov_b32 s{sORB}, s{sRB}")
    a(f"s_mov_b32 s{sOCB}, s{sHP}")
    a(f"s_mov_b32 s{sGROT}, s{sHP}")
    a(f"s_add_u32 s{sOROW}, s{sXB}, {OBUF}")
    a(f"s_lshl_b32 s{sT0}, s{sHP}, 12")
    a(f"s_add_u32 s{sOOWN}, s{sOROW}, s{sT0}")
    for i in range(4):
        a(f"v_mov_b32 v{vPOIS+i}, -1")
    for i in range(4):
        a(f"buffer_store_dwordx4 {R(vPOIS,4)}, v{vL16}, {D(D_WS)}, s{sOOWN} offen offset:{i*1024} sc1")
        vm.append("pois")
    a(f"v_and_b32 v2, 15, v{vLANE}")
    a(f"v_lshrrev_b32 v4, 1, v2")
    a(f"v_xor_b32 v4, v4, v3")
    a(f"v_lshlrev_b32 v4, 4, v4")
    a(f"v_lshl_add_u32 v4, v2, 7, v4")
    a(f"v_add_u32 v{vKRX[0]}, s{sT1}, v4")
    a(f"v_xor_b32 v{vKRX[1]}, 64, v{vKRX[0]}")
    a(f"v_lshrrev_b32 v4, 2, v2")
    a(f"v_lshl_add_u32 v5, v3, 3, v4")
    a(f"v_lshlrev_b32 v5, 6, v5")
    a(f"v_and_b32 v2, 3, v{vLANE}")
    a(f"v_lshl_add_u32 v5, v2, 3, v5")
    a(f"s_add_u32 s{sT0}, s{sT1}, 8192")
    a(f"v_add_u32 v{vKRW}, s{sT0}, v5")
    a(f"v_lshrrev_b32 v5, 5, v{vLANE}")
    a(f"v_lshl_add_u32 v5, v5, 3, v4")
    a(f"v_lshlrev_b32 v5, 7, v5")
    a(f"v_lshl_add_u32 v5, v2, 3, v5")
    a(f"v_and_b32 v{vRW[1]}, 1, v3")
    a(f"v_lshl_add_u32 v5, v{vRW[1]}, 5, v5")
    a(f"v_lshrrev_b32 v{vRW[1]}, 1, v4")
    a(f"v_lshl_add_u32 v5, v{vRW[1]}, 6, v5")
    a(f"v_add_u32 v{vRW[0]}, 16384, v5")
    a(f"v_xor_b32 v{vRW[1]}, 64, v{vRW[0]}")
    a(f"v_and_b32 v5, 31, v{vLANE}")
    a(f"v_lshrrev_b32 v{vRX[1]}, 1, v5")
    a(f"v_and_b32 v{vRX[1]}, 7, v{vRX[1]}")
    a(f"v_lshrrev_b32 v{vRX[2]}, 5, v{vLANE}")
    a(f"v_xor_b32 v{vRX[1]}, v{vRX[1]}, v{vRX[2]}")
    a(f"v_lshlrev_b32 v{vRX[1]}, 4, v{vRX[1]}")
    a(f"v_lshl_add_u32 v5, v5, 7, v{vRX[1]}")
    a(f"v_add_u32 v{vRX[0]}, s{sM0X}, v5")
    for t in range(1, 4):
        a(f"v_xor_b32 v{vRX[t]}, {32*t}, v{vRX[0]}")
    a(f"s_lshr_b32 s{sT0}, s{sW}, 1")
    a(f"s_and_b32 s{sT2}, s{sW}, 1")
    a(f"s_lshr_b32 s{sFLAG}, s{sKEY16}, 1")
    a(f"s_lshl_b32 s{sKVST}, s{sFLAG}, 12")
    a(f"s_and_b32 s{sT3}, s{sKEY16}, 1")
    a(f"s_cmp_eq_u32 s{sMAT}, 0")
    a(f"s_cselect_b32 s{sSO}, s{sT0}, s{sT2}")
    a(f"s_cselect_b32 s{sG}, s{sT2}, s{sT0}")
    a(f"s_cselect_b32 s{sCNT}, 8, 9")
    a(f"s_cselect_b32 s{sSPIN}, 9, 8")
    a(f"s_cselect_b32 s{sKVW}, 9, 8")
    a(f"s_cselect_b32 s{sWOB}, 8, 10")
    a(f"s_cselect_b32 s{sWOM}, 0, 2048")
    a(f"s_lshl_b32 s{sSO}, s{sSO}, 10")
    a(f"s_lshl_b32 s{sG}, s{sG}, s{sCNT}")
    a(f"s_add_u32 s{sSO}, s{sSO}, s{sG}")
    a(f"s_add_u32 s{sSO}, s{sSO}, {RED}")
    a(f"v_lshrrev_b32 v4, 2, v{vLANE}")
    a(f"v_lshlrev_b32 v4, 4, v4")
    a(f"v_and_b32 v5, 1, v{vLANE}")
    a(f"v_lshl_add_u32 v4, v5, 3, v4")
    a(f"v_lshrrev_b32 v5, 1, v2")
    a(f"v_lshlrev_b32 v5, s{sSPIN}, v5")
    a(f"v_add3_u32 v{vRED}, v4, v5, s{sSO}")
    a(f"s_lshl_b32 s{sT0}, s{sW}, s{sKVW}")
    a(f"s_lshl_b32 s{sT3}, s{sT3}, s{sWOB}")
    a(f"s_add_u32 s{sKVST}, s{sKVST}, s{sWOM}")
    a(f"s_add_u32 s{sKVST}, s{sKVST}, s{sT0}")
    a(f"s_add_u32 s{sKVST}, s{sKVST}, s{sT3}")
    a(f"v_lshlrev_b32 v{vL4}, 2, v{vLANE}")
    a(f"s_lshl_b32 s{sFLAG}, s{sFLAG}, 2")
    a(f"s_lshl_b32 s{sT0}, s{sW}, 16")
    a(f"s_add_u32 s{sFLAG}, s{sFLAG}, s{sT0}")
    a(f"v_lshlrev_b32 v{vFLAG}, 8, v{vLANE}")
    a(f"v_add_u32 v{vFLAG}, s{sFLAG}, v{vFLAG}")
    a(f"v_mov_b32 v{vONE}, 1")
    a(f"s_lshl_b32 s{sT2}, s{sW}, 11")
    a(f"s_add_u32 s{sT2}, s{sT2}, {RED}")
    a(f"v_add_u32 v2, s{sT2}, v{vL16}")
    stamp()
    XF, WF, KA = 16, 48, 112

    def kv_reads(q):
        for t in (2 * q, 2 * q + 1):
            a(f"ds_read_b128 {R(XF+4*t,4)}, v{vKRX[t&1]} offset:{q*2048}")
            for dt in range(2):
                for u in range(2):
                    a(f"ds_read_b64_tr_b16 {R(WF+8*t+4*dt+2*u,2)}, v{vKRW} offset:{t*2048+u*256+dt*32}")

    def kv_mfma(q, mat):
        for t in (2 * q, 2 * q + 1):
            for dt in range(2):
                w, x = R(WF + 8 * t + 4 * dt, 4), R(XF + 4 * t, 4)
                A, B = (w, x) if mat == 0 else (x, w)
                c = "0" if t == 0 else R(KA + 4 * dt, 4)
                a(f"v_mfma_f32_16x16x32_bf16 {R(KA+4*dt,4)}, {A}, {B}, {c}")

    for q in range(4):
        vmwait(f"kv{q}", " lgkmcnt(5)" if q else "")
        kv_reads(q)
    a("s_waitcnt lgkmcnt(0)")
    a(f"s_cmp_eq_u32 s{sMAT}, 0")
    a("s_cbranch_scc0 L_vmat")
    for q in range(4):
        kv_mfma(q, 0)
    a("s_branch L_kvdone")
    a.label("L_vmat")
    for q in range(4):
        kv_mfma(q, 1)
    a.label("L_kvdone")
    a("s_nop 7")
    a(f"ds_write_b128 v2, {R(KA,4)}")
    a(f"ds_write_b128 v2, {R(KA+4,4)} offset:1024")
    a("s_waitcnt lgkmcnt(0)")
    a("s_barrier")
    for p in range(4):
        a(f"ds_read_b64 {R(16+2*p,2)}, v{vRED} offset:{p*2048}")
    a("s_waitcnt lgkmcnt(2)")
    a("v_add_f32 v16, v16, v18")
    a("v_add_f32 v17, v17, v19")
    a("s_waitcnt lgkmcnt(0)")
    a("v_add_f32 v20, v20, v22")
    a("v_add_f32 v21, v21, v23")
    a("v_add_f32 v16, v16, v20")
    a("v_add_f32 v17, v17, v21")
    a("v_cvt_pk_bf16_f32 v4, v16, v17")
    a(f"buffer_store_dword v4, v{vL4}, {D(D_WS)}, s{sKVST} offen sc1")
    vm.append("kvst")
    stamp()
    for ks in range(2, 6):
        q_dma(ks)
    QB = [16, 64]
    QA = vO

    def q_read_list(ks):
        b = QB[ks & 1]
        off = (ks % 2) * SLOT
        L = []
        for t in range(4):
            L.append(f"ds_read_b128 {R(b+4*t,4)}, v{vRX[t]} offset:{off}")
            for hd in range(2):
                for u in range(2):
                    L.append(f"ds_read_b64_tr_b16 {R(b+16+8*t+4*hd+2*u,2)}, v{vRW[hd]} offset:{off+t*2048+u*512}")
        return L

    def q_mfma_list(ks):
        b = QB[ks & 1]
        L = []
        for t in range(4):
            for hd in range(2):
                c = "0" if (ks == 0 and t == 0) else R(QA[hd], 16)
                L.append(f"v_mfma_f32_32x32x16_bf16 {R(QA[hd],16)}, {R(b+16+8*t+4*hd,4)}, {R(b+4*t,4)}, {c}")
        return L

    def kvunit_list(u):
        slot = ((3 + u) % 5) * 32768
        L = []
        for p in range(8):
            pre = []
            if p % 4 == 0:
                pre = [f"s_add_u32 m0, s{sKVW}, {slot + (p>>2)*16384}", f"s_add_u32 s{sSO}, s{sKVW}, {u*32768 + (p>>2)*16384}"]
            L.append(pre + [f"buffer_load_dwordx4 v{vL16}, {D(D_WS)}, s{sSO} offen offset:{(p&3)*1024} sc1 lds"])
        return L

    a(f"s_lshl_b32 s{sKVW}, s{sW}, 12")
    a(f"s_mov_b32 s{sSPIN}, 0")
    for it in range(17):
        extra = []
        if it < 16:
            if it == P["kv_it"]:
                vmwait(f"q{it}", " lgkmcnt(0)")
                a(f"v_cmp_ne_u32 vcc, 4, v{vPOLL}")
                a("s_cbranch_vccnz L_spin")
                a.label("L_spun")
            else:
                vmwait(f"q{it}", " lgkmcnt(0)")
            a("s_barrier")
            if it == 2:
                extra.append(("flag", [f"buffer_atomic_add v{vONE}, v{vFLAG}, {D(D_DBG)}, 0 offen sc1"]))
            if it == P["poll_it"]:
                extra.append(("poll", [f"buffer_load_dword v{vPOLL}, v{vL4}, {D(D_DBG)}, 0 offen sc1"]))
            if 1 <= it <= 10:
                extra += [(f"q{it+5}", g) for g in q_dma_list(it + 5)]
            if it == P["kv_it"]:
                extra += [("u0", g) for g in kvunit_list(0)]
            if it == P["kv_it"] + 1:
                extra += [("u1", g) for g in kvunit_list(1)]
        else:
            a("s_waitcnt lgkmcnt(0)")
        reads = q_read_list(it) if it < 16 else []
        mf = q_mfma_list(it - 1) if it >= 1 else []
        n = max(len(mf), 1)
        ri = ei = 0
        for m in range(n):
            if mf:
                a(mf[m])
            rt = (len(reads) * (m + 1) + n - 1) // n
            et = (len(extra) * (m + 1) + n - 1) // n
            while ei < et:
                for t in extra[ei][1]:
                    a(t)
                vm.append(extra[ei][0])
                ei += 1
            while ri < rt:
                if ri == 15:
                    a("s_waitcnt lgkmcnt(8)")
                a(reads[ri])
                ri += 1
        if it < 16 and it % 2 == 1:
            d = 2 * SLOT if it % 6 != 5 else -4 * SLOT
            for v in vRX + vRW:
                a(f"v_add_u32 v{v}, {d}, v{v}")
    stamp()
    a(f"s_mov_b32 s{sSCALE}, {hex(f2u(math.log2(math.e) / math.sqrt(32.0)))}")
    a(f"v_mov_b32 v{vIDX}, 0xdddddddd")
    a(f"v_mov_b32 v{vAB[0]}, v{vL16}")
    a(f"v_add_u32 v{vAB[1]}, 65536, v{vL16}")
    a(f"v_add_u32 v{vAB[2]}, 131072, v{vL16}")
    a(f"v_bfe_u32 v2, v{vLANE}, 2, 1")
    a(f"v_mov_b32 v3, 0x3f803f80")
    a(f"v_mul_lo_u32 v{vONES+2}, v2, v3")
    a(f"v_mov_b32 v{vONES+3}, v{vONES+2}")
    a(f"v_sub_u32 v{vONES}, v3, v{vONES+2}")
    a(f"v_mov_b32 v{vONES+1}, v{vONES}")
    a(f"s_lshl_b32 s{sWOB}, s{sOCB}, 7")
    a(f"s_lshl_b32 s{sWOM}, s{sW}, 13")
    a(f"s_add_u32 s{sWOM}, s{sWOM}, 32768")
    for q in range(2):
        for i in range(4):
            a(f"v_mov_b32 v{vL[q]+i}, 0")
    for q in range(2):
        for i in range(16):
            a(f"v_mul_f32 v{QA[q]+i}, s{sSCALE}, v{QA[q]+i}")
        for i in range(8):
            a(f"v_cvt_pk_bf16_f32 v{vQ[q]+i}, v{QA[q]+2*i}, v{QA[q]+2*i+1}")
    vmwait("u0")
    a("s_barrier")

    def kvread(tt, f):
        addr = ((3 + (tt >> 3)) % 5) * 32768 + (tt & 7) * 4096 + f * 1024
        return f"ds_read_b128 {R(vKVB[tt&1]+4*f,4)}, v{vAB[addr>>16]} offset:{addr&0xffff}"

    def qk(q, tt, s, czero=False):
        c = R(vS[q], 16) if s else ("0" if czero else R(vC[q], 16))
        return f"v_mfma_f32_32x32x16_bf16 {R(vS[q],16)}, {R(vKVB[tt&1]+4*s,4)}, {R(vQ[q]+4*s,4)}, {c}"

    def pv(q, tt, s):
        return f"v_smfmac_f32_32x32x32_bf16 {R(vO[q],16)}, {R(vKVB[tt&1]+8+4*s,4)}, {R(vS[q]+8*s,8)}, v{vIDX}"

    def ls(q, s):
        return f"v_smfmac_f32_16x16x64_bf16 {R(vL[q],4)}, {R(vONES,4)}, {R(vS[q]+8*s,8)}, v{vIDX}"

    def rowmax_tree(q, dst, first):
        s = vS[q]
        if first:
            a(f"v_max3_f32 v{dst}, v{s}, v{s+1}, v{s+2}")
            k = 3
        else:
            k = 0
        while k + 1 < 16:
            a(f"v_max3_f32 v{dst}, v{dst}, v{s+k}, v{s+k+1}")
            k += 2
        if k < 16:
            a(f"v_max_f32 v{dst}, v{dst}, v{s+k}")

    def cfill(q, m, t):
        a(f"v_mov_b32 v{t}, v{m}")
        a("s_nop 1")
        a(f"v_permlane32_swap_b32 v{m}, v{t}")
        a(f"v_min_f32_e64 v{vC[q]}, -v{m}, -v{t}")
        for i in range(1, 16):
            a(f"v_mov_b32 v{vC[q]+i}, v{vC[q]}")

    for f in range(4):
        a(kvread(0, f))
    a(kvread(1, 0))
    for q in range(2):
        for i in range(16):
            a(f"v_mov_b32 v{vO[q]+i}, 0")
    a("s_waitcnt lgkmcnt(3)")
    a(qk(0, 0, 0, True))
    a(qk(0, 0, 1))
    a(qk(1, 0, 0, True))
    a(qk(1, 0, 1))
    a("s_nop 9")
    rowmax_tree(0, 2, True)
    cfill(0, 2, 3)
    a("s_nop 1")
    a(qk(0, 0, 0))
    a(qk(0, 0, 1))
    rowmax_tree(1, 4, True)
    cfill(1, 4, 5)
    stamp()
    pieces = []
    for u in range(2, 8):
        pieces += [(f"u{u}", g) for g in kvunit_list(u)]
    for i in range(4):
        for p in range(8):
            pre = []
            if p == 0:
                pre += [f"s_add_u32 s{sG}, s{sGROT}, s{sW}", f"s_add_u32 s{sG}, s{sG}, {4*i}", f"s_and_b32 s{sG}, s{sG}, 15",
                        f"s_lshl_b32 s{sG}, s{sG}, 17", f"s_add_u32 s{sG}, s{sG}, s{sWOB}"]
            pre += [f"s_add_u32 m0, s{sWOM}, {i*32768 + p*1024}", f"s_add_u32 s{sSO}, s{sG}, {p*16384}"]
            pieces.append((f"wo{i}", pre + [f"buffer_load_dwordx4 v{vWO}, {D(D_WO)}, s{sSO} offen lds"]))
    pi = 0
    in_period = 0
    for n in range(128):
        t, q = n >> 1, n & 1
        ex = [f"v_exp_f32 v{vS[q]+i}, v{vS[q]+i}" for i in range(16)]
        barrier = (n + 3) % 16 == 0 and n < 125
        piece = None
        if not barrier and in_period < 10 and pi < len(pieces):
            piece = pieces[pi]
            pi += 1
            in_period += 1
        salu = list(piece[1][:-1]) if piece else []

        def fill(k):
            for _ in range(k):
                if salu:
                    a(salu.pop(0))
        if q == 0:
            r1, r0 = (t + 1, 1), (t + 1, 2)
        else:
            r1, r0 = (t + 1, 3), (t + 2, 0)
        a(ex[0]); a(ex[1])
        if n > 0:
            a(pv(q ^ 1, (n - 1) >> 1, 1))
        if n < 127:
            a("s_waitcnt lgkmcnt(1)" if n < 126 else "s_waitcnt lgkmcnt(0)")
        fill(1)
        a(ex[2]); a(ex[3]); a(ex[4])
        if n > 0:
            a(ls(q ^ 1, 1))
        if r1[0] < 64:
            a(kvread(*r1))
        fill(1 if len(salu) > 2 else 0)
        a(ex[5]); a(ex[6])
        if n < 127:
            a(qk(q ^ 1, (n + 1) >> 1, 0))
        fill(1 if len(salu) <= 2 else len(salu) - 2)
        a(ex[7]); a(ex[8]); a(ex[9])
        if n < 127:
            a(qk(q ^ 1, (n + 1) >> 1, 1))
        if salu:
            fill(len(salu))
        else:
            a("s_nop 0")
        a(ex[10]); a(ex[11]); a(ex[12])
        a(pv(q, t, 0))
        if barrier:
            keep = in_period
            a(f"s_waitcnt vmcnt({keep}) lgkmcnt(0)")
            del vm[: len(vm) - keep]
            a("s_barrier")
            in_period = 0
        elif piece:
            a(piece[1][-1])
            vm.append(piece[0])
            a("s_nop 0")
        else:
            a("s_nop 1")
        a(ex[13]); a(ex[14]); a(ex[15])
        a(ls(q, 0))
        if r0[0] < 64:
            a(kvread(*r0))
        else:
            a("s_nop 0")
    assert pi == len(pieces)
    a("s_nop 0")
    a(pv(1, 63, 1))
    a(ls(1, 1))
    stamp()
    a(f"v_lshrrev_b32 v2, 5, v{vLANE}")
    a(f"v_bfe_u32 v3, v{vLANE}, 2, 2")
    a(f"v_lshl_add_u32 v4, v2, 2, v3")
    a(f"v_lshlrev_b32 v4, 7, v4")
    a(f"v_and_b32 v5, 1, v{vLANE}")
    a(f"v_lshl_add_u32 v4, v5, 6, v4")
    a(f"v_lshrrev_b32 v3, 1, v3")
    a(f"v_lshl_add_u32 v4, v3, 5, v4")
    a(f"v_bfe_u32 v5, v{vLANE}, 4, 1")
    a(f"v_lshl_add_u32 v4, v5, 4, v4")
    a(f"v_bfe_u32 v5, v{vLANE}, 1, 1")
    a(f"v_lshl_add_u32 v4, v5, 3, v4")
    a(f"v_add_u32 v{vWR[0]}, 32768, v4")
    a(f"v_xor_b32 v{vWR[1]}, 32, v{vWR[0]}")
    a(f"v_add_u32 v{vWR[2]}, 65536, v{vWR[0]}")
    a(f"v_add_u32 v{vWR[3]}, 65536, v{vWR[1]}")

    def wo_reads(y):
        i, t = y >> 2, y & 3
        L = []
        for T in range(2):
            for u in range(2):
                L.append(f"ds_read_b64_tr_b16 {R(aWF + 8*(y&3) + 4*T + 2*u, 2, 'a')}, v{vWR[T + 2*(i>>3)]} offset:{(i&7)*8192 + t*2048 + u*1024}")
        return L

    for y in range(2):
        for t in wo_reads(y):
            a(t)
    a(f"v_and_b32 v3, 31, v{vLANE}")
    a(f"v_lshlrev_b32 v3, 11, v3")
    a(f"v_lshl_add_u32 v{vOUT}, v2, 6, v3")
    a(f"s_mov_b32 s{sT0}, {hex(f2u(2.0**60))}")
    a(f"s_movk_i32 s{sT1}, 0x207")
    for q in range(2):
        o = vO[q]
        a(f"v_pk_add_f32 {R(2+2*q,2)}, {R(o,2)}, {R(o+2,2)}")
        for i in range(4, 16, 2):
            a(f"v_pk_add_f32 {R(2+2*q,2)}, {R(2+2*q,2)}, {R(o+i,2)}")
    a("v_pk_add_f32 v[2:3], v[2:3], v[4:5]")
    a(f"v_add_f32 v4, v{vL[0]}, v{vL[1]}")
    a("v_add_f32 v2, v2, v3")
    a(f"v_cmp_nge_f32 vcc, s{sT0}, v4")
    a(f"v_cmp_class_f32 s[{sT2}:{sT3}], v2, s{sT1}")
    a(f"s_or_b64 vcc, vcc, s[{sT2}:{sT3}]")
    if P["force_fb"]:
        a("s_branch L_truemax")
    else:
        a("s_cbranch_vccnz L_truemax")
    a.label("L_norm")
    OWN = vRING + 12 * 16
    a(f"v_rcp_f32 v2, v{vL[0]}")
    a(f"v_rcp_f32 v3, v{vL[1]}")
    for q in range(2):
        for s in range(2):
            for i in range(8 * s, 8 * s + 8):
                a(f"v_mul_f32 v{vO[q]+i}, v{2+q}, v{vO[q]+i}")
            for i in range(4 * s, 4 * s + 4):
                a(f"v_cvt_pk_bf16_f32 v{OWN+8*q+i}, v{vO[q]+2*i}, v{vO[q]+2*i+1}")
            for i in range(4 * s, 4 * s + 4):
                a(f"v_min_u32 v{OWN+8*q+i}, -2, v{OWN+8*q+i}")
            f = 2 * q + s
            a(f"buffer_store_dwordx4 {R(OWN+4*f,4)}, v{vL16}, {D(D_WS)}, s{sOOWN} offen offset:{f*1024} sc1")
    a(f"s_lshl_b32 s{sOUTB}, s{sORB}, 2")
    a(f"s_add_u32 s{sOUTB}, s{sOUTB}, s{sW}")
    a(f"s_lshl_b32 s{sOUTB}, s{sOUTB}, 16")
    a(f"s_add_u32 s{sOUTB}, s{sOUTB}, s{sWOB}")

    def freg(y):
        i = y >> 2
        slot = 12 if i == 0 else (i - 1) % 13
        return vRING + slot * 16 + 4 * (y & 3)

    def gsoff(i):
        return [f"s_add_u32 s{sG}, s{sGROT}, {i}", f"s_and_b32 s{sG}, s{sG}, 15", f"s_lshl_b32 s{sG}, s{sG}, 12",
                f"s_add_u32 s{sG}, s{sG}, s{sOROW}"]

    def oload(y, sreg):
        return f"buffer_load_dwordx4 {R(freg(y),4)}, v{vL16}, {D(D_WS)}, s{sreg} offen offset:{(y&3)*1024} sc1"

    def omf(y, T):
        c = "0" if y == 0 else R(vACC[T], 16)
        return f"v_mfma_f32_32x32x16_bf16 {R(vACC[T],16)}, {R(aWF + 8*(y&3) + 4*T, 4, 'a')}, {R(freg(y),4)}, {c}"

    def chk(y):
        f = freg(y)
        if y & 3 == 0:
            return [f"v_max_u32 v{vMX}, v{f}, v{f+1}", f"v_max3_u32 v{vMX}, v{vMX}, v{f+2}, v{f+3}"]
        return [f"v_max3_u32 v{vMX}, v{vMX}, v{f}, v{f+1}", f"v_max3_u32 v{vMX}, v{vMX}, v{f+2}, v{f+3}"]

    for y in range(4):
        rd = wo_reads(y + 2)
        a("s_waitcnt lgkmcnt(4)")
        a(omf(y, 0)); a(rd[0]); a(rd[1])
        a(omf(y, 1)); a(rd[2]); a(rd[3])
    a("s_waitcnt vmcnt(0)")
    vm.clear()
    a("s_barrier")
    stamp()
    LA = P["la"]
    nxt = 4
    while nxt < 4 + LA:
        if nxt % 4 == 0:
            for t in gsoff(nxt >> 2):
                a(t)
        a(oload(nxt, sG))
        vm.append(f"o{nxt}")
        nxt += 1
    for y in range(4, 8):
        vmwait(f"o{y}")
        for t in chk(y):
            a(t)
    a(f"v_cmp_eq_u32 vcc, -1, v{vMX}")
    a("s_cbranch_vccnz L_retry1")
    a.label("L_ok1")
    for y in range(4, 64):
        rd = wo_reads(y + 2) if y + 2 < 64 else []
        ck = chk(y + 4) if y + 4 < 64 else []
        a("s_waitcnt lgkmcnt(4)" if y < 63 else "s_waitcnt lgkmcnt(0)")
        a(omf(y, 0))
        if nxt < 64:
            if nxt % 4 == 0:
                for t in gsoff(nxt >> 2):
                    a(t)
            a(oload(nxt, sG))
            vm.append(f"o{nxt}")
            nxt += 1
        for t in rd[:2]:
            a(t)
        a(omf(y, 1))
        for t in rd[2:]:
            a(t)
        if ck:
            vmwait(f"o{y+4}")
            for t in ck:
                a(t)
            if y & 3 == 3:
                i = (y + 4) >> 2
                a(f"v_cmp_eq_u32 vcc, -1, v{vMX}")
                a(f"s_cbranch_vccnz L_retry{i}")
                a.label(f"L_ok{i}")
    stamp()
    a("s_nop 10")
    PK = vRING
    for T in range(2):
        for z in range(2):
            for m in range(4 * z, 4 * z + 4):
                a(f"v_cvt_pk_bf16_f32 v{PK+8*T+m}, v{vACC[T]+2*m}, v{vACC[T]+2*m+1}")
            a(f"buffer_store_dwordx4 {R(PK+8*T+4*z,4)}, v{vOUT}, {D(D_OUT)}, s{sOUTB} offen offset:{32*T+16*z}")
    if P["diag"]:
        a("s_waitcnt vmcnt(0)")
        stamp()
        assert nstamp[0] <= 8
        a(f"s_lshl_b32 s{sT0}, s2, 2")
        a(f"s_add_u32 s{sT0}, s{sT0}, s{sW}")
        a(f"s_lshl_b32 s{sT0}, s{sT0}, 6")
        a(f"s_add_u32 s{sT0}, s{sT0}, {STAMP}")
        a(f"v_mov_b32 v2, s{sT0}")
        for i in range(8):
            a(f"v_mov_b32 v{16+i}, s{sST+2*i}")
        a(f"v_mov_b32 v24, s{sSPIN}")
        a(f"buffer_store_dwordx4 v[16:19], v2, {D(D_WS)}, 0 offen")
        a(f"buffer_store_dwordx4 v[20:23], v2, {D(D_WS)}, 0 offen offset:16")
        a(f"buffer_store_dword v24, v2, {D(D_WS)}, 0 offen offset:32")
    a("s_endpgm")

    a.label("L_spin")
    a(f"buffer_load_dword v{vPOLL}, v{vL4}, {D(D_DBG)}, 0 offen sc1")
    a(f"s_add_u32 s{sSPIN}, s{sSPIN}, 1")
    a(f"s_cmp_gt_u32 s{sSPIN}, 0x400000")
    a("s_cbranch_scc1 L_spun")
    a("s_waitcnt vmcnt(0)")
    a(f"v_cmp_ne_u32 vcc, 4, v{vPOLL}")
    a("s_cbranch_vccnz L_spin")
    a("s_branch L_spun")
    for i in range(1, 16):
        a.label(f"L_retry{i}")
        a(f"s_add_u32 s{sT0}, s{sGROT}, {i}")
        a(f"s_and_b32 s{sT0}, s{sT0}, 15")
        a(f"s_lshl_b32 s{sT0}, s{sT0}, 12")
        a(f"s_add_u32 s{sT0}, s{sT0}, s{sOROW}")
        for y in range(4 * i, 4 * i + 4):
            a(oload(y, sT0))
        a(f"s_add_u32 s{sSPIN}, s{sSPIN}, 1")
        a(f"s_cmp_gt_u32 s{sSPIN}, 0x400000")
        a("s_waitcnt vmcnt(0)")
        a(f"s_cbranch_scc1 L_ok{i}")
        for y in range(4 * i, 4 * i + 4):
            for t in chk(y):
                a(t)
        a(f"v_cmp_eq_u32 vcc, -1, v{vMX}")
        a(f"s_cbranch_vccnz L_retry{i}")
        a(f"s_branch L_ok{i}")
    a.label("L_truemax")
    a("v_mov_b32 v2, 0xff800000")
    a("v_mov_b32 v4, 0xff800000")
    a(f"s_mov_b32 s{sCNT}, 0")
    a.label("L_tm1")
    for f in range(2):
        a(f"buffer_load_dwordx4 {R(vKVB[0]+4*f,4)}, v{vL16}, {D(D_WS)}, s{sCNT} offen offset:{f*1024} sc1")
    a("s_waitcnt vmcnt(0)")
    a(qk(0, 0, 0, True)); a(qk(0, 0, 1)); a(qk(1, 0, 0, True)); a(qk(1, 0, 1))
    a("s_nop 15")
    rowmax_tree(0, 2, False)
    rowmax_tree(1, 4, False)
    a(f"s_add_u32 s{sCNT}, s{sCNT}, 4096")
    a(f"s_cmp_lt_u32 s{sCNT}, {64*4096}")
    a("s_cbranch_scc1 L_tm1")
    cfill(0, 2, 3)
    cfill(1, 4, 5)
    for q in range(2):
        for i in range(16):
            a(f"v_mov_b32 v{vO[q]+i}, 0")
        for i in range(4):
            a(f"v_mov_b32 v{vL[q]+i}, 0")
    a(f"s_mov_b32 s{sCNT}, 0")
    a.label("L_tm2")
    for f in range(4):
        a(f"buffer_load_dwordx4 {R(vKVB[0]+4*f,4)}, v{vL16}, {D(D_WS)}, s{sCNT} offen offset:{f*1024} sc1")
    a("s_waitcnt vmcnt(0)")
    a(qk(0, 0, 0)); a(qk(0, 0, 1)); a(qk(1, 0, 0)); a(qk(1, 0, 1))
    a("s_nop 15")
    for q in range(2):
        for i in range(16):
            a(f"v_exp_f32 v{vS[q]+i}, v{vS[q]+i}")
    a("s_nop 1")
    for q in range(2):
        for s in range(2):
            a(pv(q, 0, s)); a(ls(q, s))
    a(f"s_add_u32 s{sCNT}, s{sCNT}, 4096")
    a(f"s_cmp_lt_u32 s{sCNT}, {64*4096}")
    a("s_nop 15")
    a("s_cbranch_scc1 L_tm2")
    a("s_branch L_norm")
    a.label("L_end")
    a("s_endpgm")

    bad = a.check()
    for b in bad[:20]:
        print("HAZARD", b, file=sys.stderr)
    assert not bad, f"{len(bad)} hazards"

    head = open(os.path.join(os.path.dirname(os.path.abspath(__file__)), "..", "cdna_kernels", "standalone__grouped_kv_mqa__prompt.s.ref")).read().split("\n")
    hdr = [l for l in head if l.startswith(";") and "@launch" not in l and "Override" not in l and "grid=ceil" not in l]
    out = "\n".join(hdr) + f"\n; @launch grid=(256,1,1) block=(256,1,1) lds={LDS_BYTES}\n"
    out += f""".amdgcn_target "amdgcn-amd-amdhsa--gfx950"
.text
.globl {NAME}
.p2align 8
.type {NAME},@function
{NAME}:
"""
    out += a.text()
    out += f""".section .rodata,"a"
.p2align 6
.amdhsa_kernel {NAME}
  .amdhsa_next_free_vgpr 288
  .amdhsa_next_free_sgpr 102
  .amdhsa_accum_offset 256
  .amdhsa_group_segment_fixed_size 0
  .amdhsa_kernarg_size 64
  .amdhsa_user_sgpr_count 2
  .amdhsa_user_sgpr_kernarg_segment_ptr 1
  .amdhsa_system_sgpr_workgroup_id_x 1
.end_amdhsa_kernel
"""
    return out


if __name__ == "__main__":
    path = sys.argv[1]
    kw = {}
    for arg in sys.argv[2:]:
        k, v = arg.split("=")
        kw[k] = v if k == "mode" else int(v)
    open(path, "w").write(gen(**kw))
```

```python
import sys, math, struct, os
sys.path.insert(0, os.path.dirname(os.path.abspath(__file__)))
from asmlib import Asm, R

NAME = "standalone__grouped_kv_mqa__prompt_kernel"


def f2u(x):
    return struct.unpack("<I", struct.pack("<f", x))[0]


DEFAULTS = dict(
    diag=False,
    mode="A",
    rot_h=1, rot_r=8,
    force_fb=False,
    poll_it=7, kv_it=12,
    dbgdiag=False,
    la=12,
)

S_X, S_WQ, S_WK, S_WV, S_WO, S_OUT, S_DBG, S_WS = 4, 6, 8, 10, 12, 14, 16, 18
D_X, D_WQ, D_WKV, D_WO, D_OUT, D_DBG, D_WS = 20, 24, 28, 32, 36, 40, 44
sW, sXCD, sIDX, sRB, sHP, sKEY16, sMAT, sROT = 48, 49, 50, 51, 52, 53, 54, 55
sT0, sT1, sT2, sT3 = 56, 57, 58, 59
sXB, sWB, sM0X, sM0W = 60, 61, 62, 63
sKVST, sFLAG, sOOWN, sOROW, sOUTB = 64, 65, 66, 67, 68
sSO, sSPIN, sKVW, sWOB, sWOM, sG = 69, 70, 71, 72, 73, 74
sORB, sOCB, sGROT, sSCALE, sCNT = 75, 76, 77, 78, 79
sPC = 80
sST = 84

vLANE, vL16 = 0, 1
vT = [2, 3, 4, 5]
vQX = [6, 7, 8, 9]
vQW = [10, 11]
vKRX = [12, 13]
vKRW = 14
vPOLL = 15
vRX = [176, 177, 178, 179]
vRW = [180, 181]
vRED = 182
vL4 = 183
vFLAG = 184
vONE = 185
vPOIS = 188
vDUMMY = 255
vS = [16, 32]
vC = [48, 64]
vQ = [80, 88]
vKVB = [96, 112]
vONES = 128
vIDX = 132
vAB = [133, 134, 135]
vO = [136, 152]
vL = [168, 172]
vWO = 192
vWR = [6, 7, 8, 9]
vOUT = 10
vMX = 11
vACC = [16, 32]
vRING = 48
aWF = 0

LDS_BYTES = 160 * 1024
SLOT = 24576
RED = 6 * SLOT
OBUF = 1 << 20
STAMP = 8 << 20


def srd(a, d, p, size):
    a(f"s_mov_b32 s{d}, s{p}")
    a(f"s_mov_b32 s{d+1}, s{p+1}")
    a(f"s_mov_b32 s{d+2}, {size}")
    a(f"s_mov_b32 s{d+3}, 0x20000")


def D(d):
    return f"s[{d}:{d+3}]"


def gen(**kw):
    P = dict(DEFAULTS)
    P.update(kw)
    a = Asm()
    nstamp = [0]

    def stamp():
        if P["diag"]:
            i = nstamp[0]
            nstamp[0] += 1
            a("s_memrealtime s[82:83]")
            a("s_waitcnt lgkmcnt(0)")
            a(f"s_mov_b32 s{sST+i}, s82")

    a("s_cmp_ge_u32 s2, 256")
    a("s_cbranch_scc1 L_end")
    a("s_load_dwordx16 s[4:19], s[0:1], 0")
    if P["diag"]:
        a(f"s_memrealtime s[{sST}:{sST+1}]")
        a(f"s_memtime s[100:101]")
        nstamp[0] = 1
    a(f"s_getpc_b64 s[{sPC}:{sPC+1}]")
    a.label("L_pc")
    a(f"v_lshrrev_b32 v2, 6, v0")
    a(f"s_and_b32 s{sXCD}, s2, 7")
    a(f"v_readfirstlane_b32 s{sW}, v2")
    a(f"s_lshr_b32 s{sIDX}, s2, 3")
    a(f"v_lshrrev_b32 v3, 5, v0")
    a(f"s_lshl_b32 s{sT0}, s{sIDX}, 3")
    a(f"v_add_u32 v3, s{sT0}, v3")
    a(f"v_lshlrev_b32 v3, 7, v3")
    a(f"v_min_u32 v3, L_end-L_pc, v3")
    a(f"global_load_dword v{vDUMMY}, v3, s[{sPC}:{sPC+1}]")
    a(f"v_and_b32 v{vLANE}, 63, v0")
    a(f"v_lshlrev_b32 v{vL16}, 4, v{vLANE}")
    a(f"s_lshr_b32 s{sT0}, s{sIDX}, 1")
    a(f"s_lshl_b32 s{sKEY16}, s{sXCD}, 4")
    a(f"s_add_u32 s{sKEY16}, s{sKEY16}, s{sT0}")
    a(f"s_and_b32 s{sMAT}, s{sIDX}, 1")
    a(f"v_lshrrev_b32 v2, 3, v{vLANE}")
    a(f"v_lshrrev_b32 v3, 4, v{vLANE}")
    a(f"v_and_b32 v4, 7, v{vLANE}")
    a(f"v_xor_b32 v5, v4, v3")
    a(f"v_lshlrev_b32 v2, 11, v2")
    a(f"v_lshl_add_u32 v{vQX[0]}, v5, 4, v2")
    a(f"v_xor_b32 v{vQX[1]}, 64, v{vQX[0]}")
    a(f"v_add_u32 v{vQX[1]}, {8*2048-1024}, v{vQX[1]}")
    a(f"s_mul_i32 s{sT1}, s{sW}, {SLOT}")
    a(f"s_add_u32 s{sT1}, s{sT1}, {2*SLOT}")
    a(f"s_lshl_b32 s{sT2}, s{sKEY16}, 15")
    a(f"s_lshl_b32 s{sT3}, s{sW}, 9")
    a(f"s_add_u32 s{sT2}, s{sT2}, s{sT3}")
    a(f"s_lshl_b32 s{sT3}, s{sW}, 14")
    a("s_waitcnt lgkmcnt(0)")
    srd(a, D_X, S_X, 2048 * 2048)
    a(f"s_cmp_eq_u32 s{sMAT}, 0")
    a(f"s_cselect_b32 s{D_WKV}, s{S_WK}, s{S_WV}")
    a(f"s_cselect_b32 s{D_WKV+1}, s{S_WK+1}, s{S_WV+1}")
    a(f"s_mov_b32 s{D_WKV+2}, 65536")
    a(f"s_mov_b32 s{D_WKV+3}, 0x20000")
    vm = ["pf"]

    def vmwait(name, extra=""):
        i = max(k for k, n in enumerate(vm) if n == name)
        n = len(vm) - 1 - i
        assert n <= 63
        a(f"s_waitcnt vmcnt({n}){extra}")
        del vm[: i + 1]

    for q in range(4):
        a(f"s_add_u32 m0, s{sT1}, {q*2048}")
        a(f"s_add_u32 s{sSO}, s{sT2}, {q*128}")
        for j in range(2):
            a(f"buffer_load_dwordx4 v{vQX[j]}, {D(D_X)}, s{sSO} offen offset:{j*1024} lds")
            vm.append(f"kv{q}")
        a(f"s_add_u32 m0, s{sT1}, {8192+q*4096}")
        a(f"s_add_u32 s{sSO}, s{sT3}, {q*4096}")
        for j in range(4):
            a(f"buffer_load_dwordx4 v{vL16}, {D(D_WKV)}, s{sSO} offen offset:{j*1024} lds")
            vm.append(f"kv{q}")
    if P["mode"] == "A":
        a(f"s_lshr_b32 s{sT0}, s{sIDX}, 4")
        a(f"s_lshl_b32 s{sRB}, s{sXCD}, 1")
        a(f"s_add_u32 s{sRB}, s{sRB}, s{sT0}")
        a(f"s_and_b32 s{sHP}, s{sIDX}, 15")
    else:
        a(f"s_lshr_b32 s{sT0}, s{sIDX}, 3")
        a(f"s_lshr_b32 s{sRB}, s{sXCD}, 1")
        a(f"s_lshl_b32 s{sRB}, s{sRB}, 2")
        a(f"s_add_u32 s{sRB}, s{sRB}, s{sT0}")
        a(f"s_and_b32 s{sHP}, s{sXCD}, 1")
        a(f"s_lshl_b32 s{sHP}, s{sHP}, 3")
        a(f"s_and_b32 s{sT0}, s{sIDX}, 7")
        a(f"s_add_u32 s{sHP}, s{sHP}, s{sT0}")
    a(f"s_mul_i32 s{sROT}, s{sHP}, {P['rot_h']}")
    a(f"s_mul_i32 s{sT0}, s{sRB}, {P['rot_r']}")
    a(f"s_add_u32 s{sROT}, s{sROT}, s{sT0}")
    srd(a, D_WQ, S_WQ, 1024 * 2048)
    a(f"v_add_u32 v{vQX[2]}, {16*2048-2048}, v{vQX[0]}")
    a(f"v_add_u32 v{vQX[3]}, {16*2048-2048}, v{vQX[1]}")
    a(f"v_and_b32 v5, 1, v3")
    a(f"v_lshlrev_b32 v5, 2, v5")
    a(f"v_xor_b32 v5, v4, v5")
    a(f"v_lshl_add_u32 v{vQW[0]}, v5, 4, v2")
    a(f"v_add_u32 v{vQW[1]}, {8*2048-1024}, v{vQW[0]}")
    a(f"v_and_b32 v5, 1, v3")
    a(f"v_lshlrev_b32 v5, 1, v5")
    a(f"v_xor_b32 v5, v4, v5")
    a(f"v_lshl_add_u32 v{vWO}, v5, 4, v2")
    a(f"s_lshl_b32 s{sXB}, s{sRB}, 2")
    a(f"s_add_u32 s{sXB}, s{sXB}, s{sW}")
    a(f"s_lshl_b32 s{sXB}, s{sXB}, 16")
    a(f"s_lshl_b32 s{sWB}, s{sW}, 15")
    a(f"s_lshl_b32 s{sT0}, s{sHP}, 7")
    a(f"s_add_u32 s{sWB}, s{sWB}, s{sT0}")
    a(f"s_lshl_b32 s{sM0X}, s{sW}, 12")
    a(f"s_lshl_b32 s{sM0W}, s{sW}, 11")
    a(f"s_add_u32 s{sM0W}, s{sM0W}, 16384")

    def q_dma_list(ks):
        slot = (ks % 6) * SLOT
        L = []
        L.append([f"s_add_u32 s{sT0}, s{sROT}, {ks}", f"s_and_b32 s{sT0}, s{sT0}, 15",
                  f"s_lshl_b32 s{sSO}, s{sT0}, 7", f"s_add_u32 m0, s{sM0X}, {slot}",
                  f"s_add_u32 s{sSO}, s{sSO}, s{sXB}",
                  f"buffer_load_dwordx4 v{vQX[0]}, {D(D_X)}, s{sSO} offen lds"])
        for j in range(1, 4):
            L.append([f"buffer_load_dwordx4 v{vQX[j]}, {D(D_X)}, s{sSO} offen offset:{j*1024} lds"])
        L.append([f"s_lshl_b32 s{sSO}, s{sT0}, 17", f"s_add_u32 m0, s{sM0W}, {slot}",
                  f"s_add_u32 s{sSO}, s{sSO}, s{sWB}",
                  f"buffer_load_dwordx4 v{vQW[0]}, {D(D_WQ)}, s{sSO} offen lds"])
        L.append([f"buffer_load_dwordx4 v{vQW[1]}, {D(D_WQ)}, s{sSO} offen offset:1024 lds"])
        return L

    def q_dma(ks):
        for grp in q_dma_list(ks):
            for t in grp:
                a(t)
            vm.append(f"q{ks}")

    q_dma(0)
    q_dma(1)
    srd(a, D_WS, S_WS, 16 << 20)
    srd(a, D_DBG, S_DBG, 256)
    srd(a, D_WO, S_WO, 1024 * 2048)
    srd(a, D_OUT, S_OUT, 2048 * 2048)
    a(f"s_mov_b32 s{sORB}, s{sRB}")
    a(f"s_mov_b32 s{sOCB}, s{sHP}")
    a(f"s_mov_b32 s{sGROT}, s{sHP}")
    a(f"s_add_u32 s{sOROW}, s{sXB}, {OBUF}")
    a(f"s_lshl_b32 s{sT0}, s{sHP}, 12")
    a(f"s_add_u32 s{sOOWN}, s{sOROW}, s{sT0}")
    for i in range(4):
        a(f"v_mov_b32 v{vPOIS+i}, -1")
    for i in range(4):
        a(f"buffer_store_dwordx4 {R(vPOIS,4)}, v{vL16}, {D(D_WS)}, s{sOOWN} offen offset:{i*1024} sc1")
        vm.append("pois")
    a(f"v_and_b32 v2, 15, v{vLANE}")
    a(f"v_lshrrev_b32 v4, 1, v2")
    a(f"v_xor_b32 v4, v4, v3")
    a(f"v_lshlrev_b32 v4, 4, v4")
    a(f"v_lshl_add_u32 v4, v2, 7, v4")
    a(f"v_add_u32 v{vKRX[0]}, s{sT1}, v4")
    a(f"v_xor_b32 v{vKRX[1]}, 64, v{vKRX[0]}")
    a(f"v_lshrrev_b32 v4, 2, v2")
    a(f"v_lshl_add_u32 v5, v3, 3, v4")
    a(f"v_lshlrev_b32 v5, 6, v5")
    a(f"v_and_b32 v2, 3, v{vLANE}")
    a(f"v_lshl_add_u32 v5, v2, 3, v5")
    a(f"s_add_u32 s{sT0}, s{sT1}, 8192")
    a(f"v_add_u32 v{vKRW}, s{sT0}, v5")
    a(f"v_lshrrev_b32 v5, 5, v{vLANE}")
    a(f"v_lshl_add_u32 v5, v5, 3, v4")
    a(f"v_lshlrev_b32 v5, 7, v5")
    a(f"v_lshl_add_u32 v5, v2, 3, v5")
    a(f"v_and_b32 v{vRW[1]}, 1, v3")
    a(f"v_lshl_add_u32 v5, v{vRW[1]}, 5, v5")
    a(f"v_lshrrev_b32 v{vRW[1]}, 1, v4")
    a(f"v_lshl_add_u32 v5, v{vRW[1]}, 6, v5")
    a(f"v_add_u32 v{vRW[0]}, 16384, v5")
    a(f"v_xor_b32 v{vRW[1]}, 64, v{vRW[0]}")
    a(f"v_and_b32 v5, 31, v{vLANE}")
    a(f"v_lshrrev_b32 v{vRX[1]}, 1, v5")
    a(f"v_and_b32 v{vRX[1]}, 7, v{vRX[1]}")
    a(f"v_lshrrev_b32 v{vRX[2]}, 5, v{vLANE}")
    a(f"v_xor_b32 v{vRX[1]}, v{vRX[1]}, v{vRX[2]}")
    a(f"v_lshlrev_b32 v{vRX[1]}, 4, v{vRX[1]}")
    a(f"v_lshl_add_u32 v5, v5, 7, v{vRX[1]}")
    a(f"v_add_u32 v{vRX[0]}, s{sM0X}, v5")
    for t in range(1, 4):
        a(f"v_xor_b32 v{vRX[t]}, {32*t}, v{vRX[0]}")
    a(f"s_lshr_b32 s{sT0}, s{sW}, 1")
    a(f"s_and_b32 s{sT2}, s{sW}, 1")
    a(f"s_lshr_b32 s{sFLAG}, s{sKEY16}, 1")
    a(f"s_lshl_b32 s{sKVST}, s{sFLAG}, 12")
    a(f"s_and_b32 s{sT3}, s{sKEY16}, 1")
    a(f"s_cmp_eq_u32 s{sMAT}, 0")
    a(f"s_cselect_b32 s{sSO}, s{sT0}, s{sT2}")
    a(f"s_cselect_b32 s{sG}, s{sT2}, s{sT0}")
    a(f"s_cselect_b32 s{sCNT}, 8, 9")
    a(f"s_cselect_b32 s{sSPIN}, 9, 8")
    a(f"s_cselect_b32 s{sKVW}, 9, 8")
    a(f"s_cselect_b32 s{sWOB}, 8, 10")
    a(f"s_cselect_b32 s{sWOM}, 0, 2048")
    a(f"s_lshl_b32 s{sSO}, s{sSO}, 10")
    a(f"s_lshl_b32 s{sG}, s{sG}, s{sCNT}")
    a(f"s_add_u32 s{sSO}, s{sSO}, s{sG}")
    a(f"s_add_u32 s{sSO}, s{sSO}, {RED}")
    a(f"v_lshrrev_b32 v4, 2, v{vLANE}")
    a(f"v_lshlrev_b32 v4, 4, v4")
    a(f"v_and_b32 v5, 1, v{vLANE}")
    a(f"v_lshl_add_u32 v4, v5, 3, v4")
    a(f"v_lshrrev_b32 v5, 1, v2")
    a(f"v_lshlrev_b32 v5, s{sSPIN}, v5")
    a(f"v_add3_u32 v{vRED}, v4, v5, s{sSO}")
    a(f"s_lshl_b32 s{sT0}, s{sW}, s{sKVW}")
    a(f"s_lshl_b32 s{sT3}, s{sT3}, s{sWOB}")
    a(f"s_add_u32 s{sKVST}, s{sKVST}, s{sWOM}")
    a(f"s_add_u32 s{sKVST}, s{sKVST}, s{sT0}")
    a(f"s_add_u32 s{sKVST}, s{sKVST}, s{sT3}")
    a(f"v_lshlrev_b32 v{vL4}, 2, v{vLANE}")
    if P["dbgdiag"]:
        a(f"s_lshr_b32 s{sFLAG}, s{sFLAG}, 1")
        a(f"s_add_u32 s{sFLAG}, s{sFLAG}, 32")
    a(f"s_lshl_b32 s{sFLAG}, s{sFLAG}, 2")
    a(f"s_lshl_b32 s{sT0}, s{sW}, 16")
    a(f"s_add_u32 s{sFLAG}, s{sFLAG}, s{sT0}")
    a(f"v_lshlrev_b32 v{vFLAG}, 8, v{vLANE}")
    a(f"v_add_u32 v{vFLAG}, s{sFLAG}, v{vFLAG}")
    a(f"v_mov_b32 v{vONE}, 1")
    vPA = vL4
    if P["dbgdiag"]:
        vPA = 186
        a(f"v_or_b32 v{vPA}, 128, v{vL4}")
    a(f"s_lshl_b32 s{sT2}, s{sW}, 11")
    a(f"s_add_u32 s{sT2}, s{sT2}, {RED}")
    a(f"v_add_u32 v2, s{sT2}, v{vL16}")
    stamp()
    XF, WF, KA = 16, 48, 112

    def kv_reads(q):
        for t in (2 * q, 2 * q + 1):
            a(f"ds_read_b128 {R(XF+4*t,4)}, v{vKRX[t&1]} offset:{q*2048}")
            for dt in range(2):
                for u in range(2):
                    a(f"ds_read_b64_tr_b16 {R(WF+8*t+4*dt+2*u,2)}, v{vKRW} offset:{t*2048+u*256+dt*32}")

    def kv_mfma(q, mat):
        for t in (2 * q, 2 * q + 1):
            for dt in range(2):
                w, x = R(WF + 8 * t + 4 * dt, 4), R(XF + 4 * t, 4)
                A, B = (w, x) if mat == 0 else (x, w)
                c = "0" if t == 0 else R(KA + 4 * dt, 4)
                a(f"v_mfma_f32_16x16x32_bf16 {R(KA+4*dt,4)}, {A}, {B}, {c}")

    for q in range(4):
        vmwait(f"kv{q}", " lgkmcnt(5)" if q else "")
        kv_reads(q)
    a("s_waitcnt lgkmcnt(0)")
    a(f"s_cmp_eq_u32 s{sMAT}, 0")
    a("s_cbranch_scc0 L_vmat")
    for q in range(4):
        kv_mfma(q, 0)
    a("s_branch L_kvdone")
    a.label("L_vmat")
    for q in range(4):
        kv_mfma(q, 1)
    a.label("L_kvdone")
    a("s_nop 7")
    a(f"ds_write_b128 v2, {R(KA,4)}")
    a(f"ds_write_b128 v2, {R(KA+4,4)} offset:1024")
    a("s_waitcnt lgkmcnt(0)")
    a("s_barrier")
    for p in range(4):
        a(f"ds_read_b64 {R(16+2*p,2)}, v{vRED} offset:{p*2048}")
    a("s_waitcnt lgkmcnt(2)")
    a("v_add_f32 v16, v16, v18")
    a("v_add_f32 v17, v17, v19")
    a("s_waitcnt lgkmcnt(0)")
    a("v_add_f32 v20, v20, v22")
    a("v_add_f32 v21, v21, v23")
    a("v_add_f32 v16, v16, v20")
    a("v_add_f32 v17, v17, v21")
    a("v_cvt_pk_bf16_f32 v4, v16, v17")
    a(f"buffer_store_dword v4, v{vL4}, {D(D_WS)}, s{sKVST} offen sc1")
    vm.append("kvst")
    stamp()
    for ks in range(2, 6):
        q_dma(ks)
    QB = [16, 64]
    QA = vO

    def q_read_list(ks):
        b = QB[ks & 1]
        off = (ks % 2) * SLOT
        L = []
        for t in range(4):
            L.append(f"ds_read_b128 {R(b+4*t,4)}, v{vRX[t]} offset:{off}")
            for hd in range(2):
                for u in range(2):
                    L.append(f"ds_read_b64_tr_b16 {R(b+16+8*t+4*hd+2*u,2)}, v{vRW[hd]} offset:{off+t*2048+u*512}")
        return L

    def q_mfma_list(ks):
        b = QB[ks & 1]
        L = []
        for t in range(4):
            for hd in range(2):
                c = "0" if (ks == 0 and t == 0) else R(QA[hd], 16)
                L.append(f"v_mfma_f32_32x32x16_bf16 {R(QA[hd],16)}, {R(b+16+8*t+4*hd,4)}, {R(b+4*t,4)}, {c}")
        return L

    def kvunit_list(u):
        slot = ((3 + u) % 5) * 32768
        L = []
        for p in range(8):
            pre = []
            if p % 4 == 0:
                pre = [f"s_add_u32 m0, s{sKVW}, {slot + (p>>2)*16384}", f"s_add_u32 s{sSO}, s{sKVW}, {u*32768 + (p>>2)*16384}"]
            L.append(pre + [f"buffer_load_dwordx4 v{vL16}, {D(D_WS)}, s{sSO} offen offset:{(p&3)*1024} sc1 lds"])
        return L

    a(f"s_lshl_b32 s{sKVW}, s{sW}, 12")
    a(f"s_mov_b32 s{sSPIN}, 0")
    for it in range(17):
        extra = []
        if it < 16:
            if it == P["kv_it"]:
                vmwait(f"q{it}", " lgkmcnt(0)")
                a(f"v_cmp_gt_u32 vcc, {8 if P['dbgdiag'] else 4}, v{vPOLL}")
                a("s_cbranch_vccnz L_spin")
                a.label("L_spun")
            else:
                vmwait(f"q{it}", " lgkmcnt(0)")
            a("s_barrier")
            if it == 2:
                extra.append(("flag", [f"buffer_atomic_add v{vONE}, v{vFLAG}, {D(D_DBG)}, 0 offen sc1"]))
            if it == P["poll_it"]:
                extra.append(("poll", [f"buffer_load_dword v{vPOLL}, v{vPA}, {D(D_DBG)}, 0 offen sc1"]))
            if 1 <= it <= 10:
                extra += [(f"q{it+5}", g) for g in q_dma_list(it + 5)]
            if it == P["kv_it"]:
                extra += [("u0", g) for g in kvunit_list(0)]
            if it == P["kv_it"] + 1:
                extra += [("u1", g) for g in kvunit_list(1)]
        else:
            a("s_waitcnt lgkmcnt(0)")
        reads = q_read_list(it) if it < 16 else []
        mf = q_mfma_list(it - 1) if it >= 1 else []
        n = max(len(mf), 1)
        ri = ei = 0
        for m in range(n):
            if mf:
                a(mf[m])
            rt = (len(reads) * (m + 1) + n - 1) // n
            et = (len(extra) * (m + 1) + n - 1) // n
            while ei < et:
                for t in extra[ei][1]:
                    a(t)
                vm.append(extra[ei][0])
                ei += 1
            while ri < rt:
                if ri == 15:
                    a("s_waitcnt lgkmcnt(8)")
                a(reads[ri])
                ri += 1
        if it < 16 and it % 2 == 1:
            d = 2 * SLOT if it % 6 != 5 else -4 * SLOT
            for v in vRX + vRW:
                a(f"v_add_u32 v{v}, {d}, v{v}")
    stamp()
    a(f"s_mov_b32 s{sSCALE}, {hex(f2u(math.log2(math.e) / math.sqrt(32.0)))}")
    a(f"v_mov_b32 v{vIDX}, 0xdddddddd")
    a(f"v_mov_b32 v{vAB[0]}, v{vL16}")
    a(f"v_add_u32 v{vAB[1]}, 65536, v{vL16}")
    a(f"v_add_u32 v{vAB[2]}, 131072, v{vL16}")
    a(f"v_bfe_u32 v2, v{vLANE}, 2, 1")
    a(f"v_mov_b32 v3, 0x3f803f80")
    a(f"v_mul_lo_u32 v{vONES+2}, v2, v3")
    a(f"v_mov_b32 v{vONES+3}, v{vONES+2}")
    a(f"v_sub_u32 v{vONES}, v3, v{vONES+2}")
    a(f"v_mov_b32 v{vONES+1}, v{vONES}")
    a(f"s_lshl_b32 s{sWOB}, s{sOCB}, 7")
    a(f"s_lshl_b32 s{sWOM}, s{sW}, 13")
    a(f"s_add_u32 s{sWOM}, s{sWOM}, 32768")
    for q in range(2):
        for i in range(4):
            a(f"v_mov_b32 v{vL[q]+i}, 0")
    for q in range(2):
        for i in range(16):
            a(f"v_mul_f32 v{QA[q]+i}, s{sSCALE}, v{QA[q]+i}")
        for i in range(8):
            a(f"v_cvt_pk_bf16_f32 v{vQ[q]+i}, v{QA[q]+2*i}, v{QA[q]+2*i+1}")
    vmwait("u0")
    a("s_barrier")

    def kvread(tt, f):
        addr = ((3 + (tt >> 3)) % 5) * 32768 + (tt & 7) * 4096 + f * 1024
        return f"ds_read_b128 {R(vKVB[tt&1]+4*f,4)}, v{vAB[addr>>16]} offset:{addr&0xffff}"

    def qk(q, tt, s, czero=False):
        c = R(vS[q], 16) if s else ("0" if czero else R(vC[q], 16))
        return f"v_mfma_f32_32x32x16_bf16 {R(vS[q],16)}, {R(vKVB[tt&1]+4*s,4)}, {R(vQ[q]+4*s,4)}, {c}"

    def pv(q, tt, s):
        return f"v_smfmac_f32_32x32x32_bf16 {R(vO[q],16)}, {R(vKVB[tt&1]+8+4*s,4)}, {R(vS[q]+8*s,8)}, v{vIDX}"

    def ls(q, s):
        return f"v_smfmac_f32_16x16x64_bf16 {R(vL[q],4)}, {R(vONES,4)}, {R(vS[q]+8*s,8)}, v{vIDX}"

    def rowmax_tree(q, dst, first):
        s = vS[q]
        if first:
            a(f"v_max3_f32 v{dst}, v{s}, v{s+1}, v{s+2}")
            k = 3
        else:
            k = 0
        while k + 1 < 16:
            a(f"v_max3_f32 v{dst}, v{dst}, v{s+k}, v{s+k+1}")
            k += 2
        if k < 16:
            a(f"v_max_f32 v{dst}, v{dst}, v{s+k}")

    def cfill(q, m, t):
        a(f"v_mov_b32 v{t}, v{m}")
        a("s_nop 1")
        a(f"v_permlane32_swap_b32 v{m}, v{t}")
        a(f"v_min_f32_e64 v{vC[q]}, -v{m}, -v{t}")
        for i in range(1, 16):
            a(f"v_mov_b32 v{vC[q]+i}, v{vC[q]}")

    for f in range(4):
        a(kvread(0, f))
    a(kvread(1, 0))
    for q in range(2):
        for i in range(16):
            a(f"v_mov_b32 v{vO[q]+i}, 0")
    a("s_waitcnt lgkmcnt(3)")
    a(qk(0, 0, 0, True))
    a(qk(0, 0, 1))
    a(qk(1, 0, 0, True))
    a(qk(1, 0, 1))
    a("s_nop 9")
    rowmax_tree(0, 2, True)
    cfill(0, 2, 3)
    a("s_nop 1")
    a(qk(0, 0, 0))
    a(qk(0, 0, 1))
    rowmax_tree(1, 4, True)
    cfill(1, 4, 5)
    stamp()
    pieces = []
    for u in range(2, 8):
        pieces += [(f"u{u}", g) for g in kvunit_list(u)]
    for i in range(4):
        for p in range(8):
            pre = []
            if p == 0:
                pre += [f"s_add_u32 s{sG}, s{sGROT}, s{sW}", f"s_add_u32 s{sG}, s{sG}, {4*i}", f"s_and_b32 s{sG}, s{sG}, 15",
                        f"s_lshl_b32 s{sG}, s{sG}, 17", f"s_add_u32 s{sG}, s{sG}, s{sWOB}"]
            pre += [f"s_add_u32 m0, s{sWOM}, {i*32768 + p*1024}", f"s_add_u32 s{sSO}, s{sG}, {p*16384}"]
            pieces.append((f"wo{i}", pre + [f"buffer_load_dwordx4 v{vWO}, {D(D_WO)}, s{sSO} offen lds"]))
    pi = 0
    in_period = 0
    for n in range(128):
        t, q = n >> 1, n & 1
        ex = [f"v_exp_f32 v{vS[q]+i}, v{vS[q]+i}" for i in range(16)]
        barrier = (n + 3) % 16 == 0 and n < 125
        piece = None
        if not barrier and in_period < 10 and pi < len(pieces):
            piece = pieces[pi]
            pi += 1
            in_period += 1
        salu = list(piece[1][:-1]) if piece else []

        def fill(k):
            for _ in range(k):
                if salu:
                    a(salu.pop(0))
        if q == 0:
            r1, r0 = (t + 1, 1), (t + 1, 2)
        else:
            r1, r0 = (t + 1, 3), (t + 2, 0)
        a(ex[0]); a(ex[1])
        if n > 0:
            a(pv(q ^ 1, (n - 1) >> 1, 1))
        if n < 127:
            a("s_waitcnt lgkmcnt(1)" if n < 126 else "s_waitcnt lgkmcnt(0)")
        fill(1)
        a(ex[2]); a(ex[3]); a(ex[4])
        if n > 0:
            a(ls(q ^ 1, 1))
        if r1[0] < 64:
            a(kvread(*r1))
        fill(1 if len(salu) > 2 else 0)
        a(ex[5]); a(ex[6])
        if n < 127:
            a(qk(q ^ 1, (n + 1) >> 1, 0))
        fill(1 if len(salu) <= 2 else len(salu) - 2)
        a(ex[7]); a(ex[8]); a(ex[9])
        if n < 127:
            a(qk(q ^ 1, (n + 1) >> 1, 1))
        if salu:
            fill(len(salu))
        else:
            a("s_nop 0")
        a(ex[10]); a(ex[11]); a(ex[12])
        a(pv(q, t, 0))
        if barrier:
            keep = in_period
            a(f"s_waitcnt vmcnt({keep}) lgkmcnt(0)")
            del vm[: len(vm) - keep]
            a("s_barrier")
            in_period = 0
        elif piece:
            a(piece[1][-1])
            vm.append(piece[0])
            a("s_nop 0")
        else:
            a("s_nop 1")
        a(ex[13]); a(ex[14]); a(ex[15])
        a(ls(q, 0))
        if r0[0] < 64:
            a(kvread(*r0))
        else:
            a("s_nop 0")
    assert pi == len(pieces)
    a("s_nop 0")
    a(pv(1, 63, 1))
    a(ls(1, 1))
    stamp()
    a(f"v_lshrrev_b32 v2, 5, v{vLANE}")
    a(f"v_bfe_u32 v3, v{vLANE}, 2, 2")
    a(f"v_lshl_add_u32 v4, v2, 2, v3")
    a(f"v_lshlrev_b32 v4, 7, v4")
    a(f"v_and_b32 v5, 1, v{vLANE}")
    a(f"v_lshl_add_u32 v4, v5, 6, v4")
    a(f"v_lshrrev_b32 v3, 1, v3")
    a(f"v_lshl_add_u32 v4, v3, 5, v4")
    a(f"v_bfe_u32 v5, v{vLANE}, 4, 1")
    a(f"v_lshl_add_u32 v4, v5, 4, v4")
    a(f"v_bfe_u32 v5, v{vLANE}, 1, 1")
    a(f"v_lshl_add_u32 v4, v5, 3, v4")
    a(f"v_add_u32 v{vWR[0]}, 32768, v4")
    a(f"v_xor_b32 v{vWR[1]}, 32, v{vWR[0]}")
    a(f"v_add_u32 v{vWR[2]}, 65536, v{vWR[0]}")
    a(f"v_add_u32 v{vWR[3]}, 65536, v{vWR[1]}")

    def wo_reads(y):
        i, t = y >> 2, y & 3
        L = []
        for T in range(2):
            for u in range(2):
                L.append(f"ds_read_b64_tr_b16 {R(aWF + 8*(y&3) + 4*T + 2*u, 2, 'a')}, v{vWR[T + 2*(i>>3)]} offset:{(i&7)*8192 + t*2048 + u*1024}")
        return L

    for y in range(2):
        for t in wo_reads(y):
            a(t)
    a(f"v_and_b32 v3, 31, v{vLANE}")
    a(f"v_lshlrev_b32 v3, 11, v3")
    a(f"v_lshl_add_u32 v{vOUT}, v2, 6, v3")
    a(f"s_mov_b32 s{sT0}, {hex(f2u(2.0**60))}")
    a(f"s_movk_i32 s{sT1}, 0x207")
    for q in range(2):
        o = vO[q]
        a(f"v_pk_add_f32 {R(2+2*q,2)}, {R(o,2)}, {R(o+2,2)}")
        for i in range(4, 16, 2):
            a(f"v_pk_add_f32 {R(2+2*q,2)}, {R(2+2*q,2)}, {R(o+i,2)}")
    a("v_pk_add_f32 v[2:3], v[2:3], v[4:5]")
    a(f"v_add_f32 v4, v{vL[0]}, v{vL[1]}")
    a("v_add_f32 v2, v2, v3")
    a(f"v_cmp_nge_f32 vcc, s{sT0}, v4")
    a(f"v_cmp_class_f32 s[{sT2}:{sT3}], v2, s{sT1}")
    a(f"s_or_b64 vcc, vcc, s[{sT2}:{sT3}]")
    if P["force_fb"]:
        a("s_branch L_truemax")
    else:
        a("s_cbranch_vccnz L_truemax")
    a.label("L_norm")
    OWN = vRING + 12 * 16
    a(f"v_rcp_f32 v2, v{vL[0]}")
    a(f"v_rcp_f32 v3, v{vL[1]}")
    for q in range(2):
        for s in range(2):
            for i in range(8 * s, 8 * s + 8):
                a(f"v_mul_f32 v{vO[q]+i}, v{2+q}, v{vO[q]+i}")
            for i in range(4 * s, 4 * s + 4):
                a(f"v_cvt_pk_bf16_f32 v{OWN+8*q+i}, v{vO[q]+2*i}, v{vO[q]+2*i+1}")
            for i in range(4 * s, 4 * s + 4):
                a(f"v_min_u32 v{OWN+8*q+i}, -2, v{OWN+8*q+i}")
            f = 2 * q + s
            a(f"buffer_store_dwordx4 {R(OWN+4*f,4)}, v{vL16}, {D(D_WS)}, s{sOOWN} offen offset:{f*1024} sc1")
    a(f"s_lshl_b32 s{sOUTB}, s{sORB}, 2")
    a(f"s_add_u32 s{sOUTB}, s{sOUTB}, s{sW}")
    a(f"s_lshl_b32 s{sOUTB}, s{sOUTB}, 16")
    a(f"s_add_u32 s{sOUTB}, s{sOUTB}, s{sWOB}")

    def freg(y):
        i = y >> 2
        slot = 12 if i == 0 else (i - 1) % 13
        return vRING + slot * 16 + 4 * (y & 3)

    def gsoff(i):
        return [f"s_add_u32 s{sG}, s{sGROT}, {i}", f"s_and_b32 s{sG}, s{sG}, 15", f"s_lshl_b32 s{sG}, s{sG}, 12",
                f"s_add_u32 s{sG}, s{sG}, s{sOROW}"]

    def oload(y, sreg):
        return f"buffer_load_dwordx4 {R(freg(y),4)}, v{vL16}, {D(D_WS)}, s{sreg} offen offset:{(y&3)*1024} sc1"

    def omf(y, T):
        c = "0" if y == 0 else R(vACC[T], 16)
        return f"v_mfma_f32_32x32x16_bf16 {R(vACC[T],16)}, {R(aWF + 8*(y&3) + 4*T, 4, 'a')}, {R(freg(y),4)}, {c}"

    def chk(y):
        f = freg(y)
        if y & 3 == 0:
            return [f"v_max_u32 v{vMX}, v{f}, v{f+1}", f"v_max3_u32 v{vMX}, v{vMX}, v{f+2}, v{f+3}"]
        return [f"v_max3_u32 v{vMX}, v{vMX}, v{f}, v{f+1}", f"v_max3_u32 v{vMX}, v{vMX}, v{f+2}, v{f+3}"]

    for y in range(4):
        rd = wo_reads(y + 2)
        a("s_waitcnt lgkmcnt(4)")
        a(omf(y, 0)); a(rd[0]); a(rd[1])
        a(omf(y, 1)); a(rd[2]); a(rd[3])
    a("s_waitcnt vmcnt(0)")
    vm.clear()
    a("s_barrier")
    stamp()
    LA = P["la"]
    nxt = 4
    while nxt < 4 + LA:
        if nxt % 4 == 0:
            for t in gsoff(nxt >> 2):
                a(t)
        a(oload(nxt, sG))
        vm.append(f"o{nxt}")
        nxt += 1
    for y in range(4, 8):
        vmwait(f"o{y}")
        for t in chk(y):
            a(t)
    a(f"v_cmp_eq_u32 vcc, -1, v{vMX}")
    a("s_cbranch_vccnz L_retry1")
    a.label("L_ok1")
    for y in range(4, 64):
        rd = wo_reads(y + 2) if y + 2 < 64 else []
        ck = chk(y + 4) if y + 4 < 64 else []
        a("s_waitcnt lgkmcnt(4)" if y < 63 else "s_waitcnt lgkmcnt(0)")
        a(omf(y, 0))
        if nxt < 64:
            if nxt % 4 == 0:
                for t in gsoff(nxt >> 2):
                    a(t)
            a(oload(nxt, sG))
            vm.append(f"o{nxt}")
            nxt += 1
        for t in rd[:2]:
            a(t)
        a(omf(y, 1))
        for t in rd[2:]:
            a(t)
        if ck:
            vmwait(f"o{y+4}")
            for t in ck:
                a(t)
            if y & 3 == 3:
                i = (y + 4) >> 2
                a(f"v_cmp_eq_u32 vcc, -1, v{vMX}")
                a(f"s_cbranch_vccnz L_retry{i}")
                a.label(f"L_ok{i}")
    stamp()
    a("s_nop 10")
    PK = vRING
    for T in range(2):
        for z in range(2):
            for m in range(4 * z, 4 * z + 4):
                a(f"v_cvt_pk_bf16_f32 v{PK+8*T+m}, v{vACC[T]+2*m}, v{vACC[T]+2*m+1}")
            a(f"buffer_store_dwordx4 {R(PK+8*T+4*z,4)}, v{vOUT}, {D(D_OUT)}, s{sOUTB} offen offset:{32*T+16*z}")
    if P["diag"]:
        a("s_waitcnt vmcnt(0)")
        stamp()
        assert nstamp[0] <= 14
        a("s_memtime s[82:83]")
        a("s_waitcnt lgkmcnt(0)")
        a("s_sub_u32 s82, s82, s100")
        a(f"s_lshl_b32 s{sT0}, s2, 2")
        a(f"s_add_u32 s{sT0}, s{sT0}, s{sW}")
        a(f"s_lshl_b32 s{sT0}, s{sT0}, 6")
        a(f"s_add_u32 s{sT0}, s{sT0}, {STAMP}")
        a(f"v_mov_b32 v2, s{sT0}")
        for i in range(14):
            a(f"v_mov_b32 v{16+i}, s{sST+i}" if i < nstamp[0] else f"v_mov_b32 v{16+i}, 0")
        a(f"v_mov_b32 v30, s82")
        a(f"v_mov_b32 v31, s{sSPIN}")
        for i in range(4):
            a(f"buffer_store_dwordx4 v[{16+4*i}:{19+4*i}], v2, {D(D_WS)}, 0 offen offset:{16*i}")
        if P["dbgdiag"]:
            a("s_waitcnt vmcnt(0)")
            a("s_nop 1")
            a("v_sub_u32 v29, 0, v16")
            a(f"v_lshlrev_b32 v2, 8, v{vLANE}")
            a(f"s_lshl_b32 s{sT0}, s{sW}, 16")
            a(f"v_add_u32 v2, s{sT0}, v2")
            for i in range(16):
                a(f"buffer_atomic_umax v{16+i}, v2, {D(D_DBG)}, 0 offen offset:{4*i} sc1")
    a("s_endpgm")

    a.label("L_spin")
    a(f"buffer_load_dword v{vPOLL}, v{vPA}, {D(D_DBG)}, 0 offen sc1")
    a(f"s_add_u32 s{sSPIN}, s{sSPIN}, 1")
    a(f"s_cmp_gt_u32 s{sSPIN}, 0x400000")
    a("s_cbranch_scc1 L_spun")
    a("s_waitcnt vmcnt(0)")
    a(f"v_cmp_gt_u32 vcc, {8 if P['dbgdiag'] else 4}, v{vPOLL}")
    a("s_cbranch_vccnz L_spin")
    a("s_branch L_spun")
    for i in range(1, 16):
        a.label(f"L_retry{i}")
        a(f"s_add_u32 s{sT0}, s{sGROT}, {i}")
        a(f"s_and_b32 s{sT0}, s{sT0}, 15")
        a(f"s_lshl_b32 s{sT0}, s{sT0}, 12")
        a(f"s_add_u32 s{sT0}, s{sT0}, s{sOROW}")
        for y in range(4 * i, 4 * i + 4):
            a(oload(y, sT0))
        a(f"s_add_u32 s{sSPIN}, s{sSPIN}, 1")
        a(f"s_cmp_gt_u32 s{sSPIN}, 0x400000")
        a("s_waitcnt vmcnt(0)")
        a(f"s_cbranch_scc1 L_ok{i}")
        for y in range(4 * i, 4 * i + 4):
            for t in chk(y):
                a(t)
        a(f"v_cmp_eq_u32 vcc, -1, v{vMX}")
        a(f"s_cbranch_vccnz L_retry{i}")
        a(f"s_branch L_ok{i}")
    a.label("L_truemax")
    a("v_mov_b32 v2, 0xff800000")
    a("v_mov_b32 v4, 0xff800000")
    a(f"s_mov_b32 s{sCNT}, 0")
    a.label("L_tm1")
    for f in range(2):
        a(f"buffer_load_dwordx4 {R(vKVB[0]+4*f,4)}, v{vL16}, {D(D_WS)}, s{sCNT} offen offset:{f*1024} sc1")
    a("s_waitcnt vmcnt(0)")
    a(qk(0, 0, 0, True)); a(qk(0, 0, 1)); a(qk(1, 0, 0, True)); a(qk(1, 0, 1))
    a("s_nop 15")
    rowmax_tree(0, 2, False)
    rowmax_tree(1, 4, False)
    a(f"s_add_u32 s{sCNT}, s{sCNT}, 4096")
    a(f"s_cmp_lt_u32 s{sCNT}, {64*4096}")
    a("s_cbranch_scc1 L_tm1")
    cfill(0, 2, 3)
    cfill(1, 4, 5)
    for q in range(2):
        for i in range(16):
            a(f"v_mov_b32 v{vO[q]+i}, 0")
        for i in range(4):
            a(f"v_mov_b32 v{vL[q]+i}, 0")
    a(f"s_mov_b32 s{sCNT}, 0")
    a.label("L_tm2")
    for f in range(4):
        a(f"buffer_load_dwordx4 {R(vKVB[0]+4*f,4)}, v{vL16}, {D(D_WS)}, s{sCNT} offen offset:{f*1024} sc1")
    a("s_waitcnt vmcnt(0)")
    a(qk(0, 0, 0)); a(qk(0, 0, 1)); a(qk(1, 0, 0)); a(qk(1, 0, 1))
    a("s_nop 15")
    for q in range(2):
        for i in range(16):
            a(f"v_exp_f32 v{vS[q]+i}, v{vS[q]+i}")
    a("s_nop 1")
    for q in range(2):
        for s in range(2):
            a(pv(q, 0, s)); a(ls(q, s))
    a(f"s_add_u32 s{sCNT}, s{sCNT}, 4096")
    a(f"s_cmp_lt_u32 s{sCNT}, {64*4096}")
    a("s_nop 15")
    a("s_cbranch_scc1 L_tm2")
    a("s_branch L_norm")
    a.label("L_end")
    a("s_endpgm")

    bad = a.check()
    for b in bad[:20]:
        print("HAZARD", b, file=sys.stderr)
    assert not bad, f"{len(bad)} hazards"

    head = open(os.path.join(os.path.dirname(os.path.abspath(__file__)), "..", "cdna_kernels", "standalone__grouped_kv_mqa__prompt.s.ref")).read().split("\n")
    hdr = [l for l in head if l.startswith(";") and "@launch" not in l and "Override" not in l and "grid=ceil" not in l]
    out = "\n".join(hdr) + f"\n; @launch grid=(256,1,1) block=(256,1,1) lds={LDS_BYTES}\n"
    out += f""".amdgcn_target "amdgcn-amd-amdhsa--gfx950"
.text
.globl {NAME}
.p2align 8
.type {NAME},@function
{NAME}:
"""
    out += a.text()
    out += f""".section .rodata,"a"
.p2align 6
.amdhsa_kernel {NAME}
  .amdhsa_next_free_vgpr 288
  .amdhsa_next_free_sgpr 102
  .amdhsa_accum_offset 256
  .amdhsa_group_segment_fixed_size 0
  .amdhsa_kernarg_size 64
  .amdhsa_user_sgpr_count 2
  .amdhsa_user_sgpr_kernarg_segment_ptr 1
  .amdhsa_system_sgpr_workgroup_id_x 1
.end_amdhsa_kernel
"""
    return out


if __name__ == "__main__":
    path = sys.argv[1]
    kw = {}
    for arg in sys.argv[2:]:
        k, v = arg.split("=")
        kw[k] = v if k == "mode" else int(v)
    open(path, "w").write(gen(**kw))
```

```python
import sys, math, struct, os
sys.path.insert(0, os.path.dirname(os.path.abspath(__file__)))
from asmlib import Asm, R

NAME = "standalone__grouped_kv_mqa__prompt_kernel"


def f2u(x):
    return struct.unpack("<I", struct.pack("<f", x))[0]


DEFAULTS = dict(
    diag=0,
    mode="A",
    rot_h=0, rot_x=1, rot_j=8,
    force_fb=0,
    flag_it=3, poll_it=12, kv_it=14,
    lead0=3, skip=(3, 6),
    early=8, mid=5, la=12,
    xnt=0, touch=1, lrows=4, outpol="", qstamp=0, czero=0, wla=3, lstamp=0,
)

S_X, S_WQ, S_WK, S_WV, S_WO, S_OUT, S_DBG, S_WS = 4, 6, 8, 10, 12, 14, 16, 18
D_X, D_WQ, D_WKV, D_WO, D_OUT, D_DBG, D_WS = 20, 24, 28, 32, 36, 40, 44
sW, sXCD, sIDX, sRB, sHP, sKEY16, sMAT, sROT = 48, 49, 50, 51, 52, 53, 54, 55
sT0, sT1, sT2, sT3 = 56, 57, 58, 59
sXB, sWB, sKVST, sOOWN, sOROW, sOUTB = 60, 61, 62, 63, 64, 65
sSO, sSPIN, sG, sCNT, sSC, sT4 = 66, 67, 68, 69, 70, 71
sPC = 72
sTM = 74
sOG = 80

vLANE, vL16 = 0, 1
vWR = [6, 7, 8, 9]
vOUT, vMX, vTW, vTR, vPOLL, vSTAMP = 10, 11, 12, 13, 14, 15
vS = [16, 32]
vC = [48, 64]
vQ = [80, 88]
vKVB = [96, 112]
vONES, vIDX = 128, 132
vAB = [133, 134, 135]
vO = [136, 152]
vL = [168, 172]
vOWN = 176
vRX = [176, 177, 178, 179]
vRW = [180, 181]
vKRX = [182, 183]
vKRW, vRED, vL4, vPW = 184, 185, 186, 187
vQA = [192, 208]
vDUM = [254, 255]
vACC = [16, 32]
vWF = 112
RING = list(range(192, 256, 4)) + list(range(48, 112, 4))
lQX = [6, 7, 8, 9]
lQW = [10, 11, 12, 13]
lWO = [16, 17, 18, 19]
lPO = 20

LDS_BYTES = 160 * 1024
SLOT = 24576
RED = 6 * SLOT
OBUF = 1 << 20
STAMP = 8 << 20


def srd(a, d, p, size):
    a(f"s_mov_b32 s{d}, s{p}")
    a(f"s_mov_b32 s{d+1}, s{p+1}")
    a(f"s_mov_b32 s{d+2}, {size}")
    a(f"s_mov_b32 s{d+3}, 0x20000")


def D(d):
    return f"s[{d}:{d+3}]"


class VM:
    def __init__(self, a):
        self.a, self.q = a, []

    def add(self, name):
        self.q.append(name)

    def wait(self, name, extra=""):
        idx = [k for k, n in enumerate(self.q) if n == name]
        if not idx:
            if extra:
                self.a("s_waitcnt" + extra)
            return
        n = len(self.q) - 1 - idx[-1]
        self.a(f"s_waitcnt vmcnt({min(n, 63)}){extra}")
        del self.q[: len(self.q) - min(n, 63)]

    def drain(self):
        self.a("s_waitcnt vmcnt(0)")
        self.q.clear()


def gen(**kw):
    P = dict(DEFAULTS)
    P.update(kw)
    a = Asm()
    nst = [0]

    def stamp():
        if P["diag"]:
            i = nst[0]
            nst[0] += 1
            a(f"s_memrealtime s[{sTM}:{sTM+1}]")
            a(f"s_memtime s[{sTM+2}:{sTM+3}]")
            a("s_waitcnt lgkmcnt(0)")
            a(f"s_sub_u32 s{sTM+2}, s{sTM+2}, s{sTM+4}")
            a(f"v_writelane_b32 v{vSTAMP}, s{sTM}, {i}")
            a(f"v_writelane_b32 v{vSTAMP}, s{sTM+2}, {16+i}")

    def stamp_out(wave_reg):
        a(f"v_writelane_b32 v{vSTAMP}, s{sSPIN}, 15")
        a(f"s_mul_i32 s{sT0}, s2, 5")
        a(f"s_add_u32 s{sT0}, s{sT0}, {wave_reg}")
        a(f"s_lshl_b32 s{sT0}, s{sT0}, 8")
        a(f"s_add_u32 s{sT0}, s{sT0}, {STAMP}")
        a(f"v_lshlrev_b32 v2, 2, v{vLANE}")
        a(f"buffer_store_dword v{vSTAMP}, v2, {D(D_WS)}, s{sT0} offen")

    a("s_cmp_ge_u32 s2, 256")
    a("s_cbranch_scc1 L_end")
    a("s_load_dwordx16 s[4:19], s[0:1], 0")
    if P["diag"]:
        a(f"s_memrealtime s[{sTM}:{sTM+1}]")
        a(f"s_memtime s[{sTM+4}:{sTM+5}]")
        a(f"v_mov_b32 v{vSTAMP}, 0")
    a("v_lshrrev_b32 v2, 6, v0")
    a(f"s_and_b32 s{sXCD}, s2, 7")
    a(f"v_readfirstlane_b32 s{sW}, v2")
    a(f"s_lshr_b32 s{sIDX}, s2, 3")
    a(f"v_and_b32 v{vLANE}, 63, v0")
    a(f"v_lshlrev_b32 v{vL16}, 4, v{vLANE}")
    if P["mode"] == "A":
        a(f"s_lshr_b32 s{sT0}, s{sIDX}, 4")
        a(f"s_lshl_b32 s{sRB}, s{sXCD}, 1")
        a(f"s_add_u32 s{sRB}, s{sRB}, s{sT0}")
        a(f"s_and_b32 s{sHP}, s{sIDX}, 15")
    else:
        a(f"s_lshr_b32 s{sT0}, s{sIDX}, 3")
        a(f"s_lshr_b32 s{sRB}, s{sXCD}, 1")
        a(f"s_lshl_b32 s{sRB}, s{sRB}, 2")
        a(f"s_add_u32 s{sRB}, s{sRB}, s{sT0}")
        a(f"s_and_b32 s{sHP}, s{sXCD}, 1")
        a(f"s_lshl_b32 s{sHP}, s{sHP}, 3")
        a(f"s_and_b32 s{sT0}, s{sIDX}, 7")
        a(f"s_add_u32 s{sHP}, s{sHP}, s{sT0}")
    a(f"s_lshr_b32 s{sT0}, s{sHP}, 1")
    a(f"s_lshl_b32 s{sKEY16}, s{sRB}, 3")
    a(f"s_add_u32 s{sKEY16}, s{sKEY16}, s{sT0}")
    a(f"s_and_b32 s{sMAT}, s{sHP}, 1")
    a(f"s_mov_b32 s{sSPIN}, 0")
    a(f"s_cmp_lg_u32 s{sW}, 0")
    a("s_cbranch_scc1 L_compute")

    vm = VM(a)
    nst[0] = 1
    a(f"v_lshrrev_b32 v2, 3, v{vLANE}")
    a(f"v_lshrrev_b32 v3, 4, v{vLANE}")
    a(f"v_and_b32 v4, 7, v{vLANE}")
    a(f"v_xor_b32 v5, v4, v3")
    a(f"v_lshlrev_b32 v2, 11, v2")
    a(f"v_lshl_add_u32 v{lQX[0]}, v5, 4, v2")
    a(f"v_xor_b32 v{lQX[1]}, 64, v{lQX[0]}")
    a(f"v_add_u32 v{lQX[1]}, {8*2048-1024}, v{lQX[1]}")
    a(f"s_lshl_b32 s{sT2}, s{sKEY16}, 15")
    a(f"s_mov_b32 s{D_X+2}, {2048*2048}")
    a(f"s_mov_b32 s{D_X+3}, 0x20000")
    a("s_waitcnt lgkmcnt(0)")
    if P["diag"]:
        a(f"v_writelane_b32 v{vSTAMP}, s{sTM}, 0")
    a(f"s_mov_b32 s{D_X}, s{S_X}")
    a(f"s_mov_b32 s{D_X+1}, s{S_X+1}")
    xnt = " nt" if P["xnt"] else ""
    for w in range(4):
        for q in range(4):
            a(f"s_mov_b32 m0, {(2+w)*SLOT + q*2048}")
            if w or q:
                a(f"s_add_u32 s{sT2}, s{sT2}, 128")
            else:
                a("s_nop 0")
            for j in range(2):
                a(f"buffer_load_dwordx4 v{lQX[j]}, {D(D_X)}, s{sT2} offen offset:{j*1024}{xnt} lds")
                vm.add("xkv")
    if P["lstamp"]:
        stamp()
    srd(a, D_WQ, S_WQ, 1024 * 2048)
    a(f"v_and_b32 v5, 1, v3")
    a(f"v_lshlrev_b32 v14, 2, v5")
    a(f"v_xor_b32 v14, v4, v14")
    a(f"v_lshl_add_u32 v{lQW[0]}, v14, 4, v2")
    for j in range(1, 4):
        a(f"v_add_u32 v{lQW[j]}, {j*(8*2048-1024)}, v{lQW[0]}")
    a(f"s_lshr_b32 s{sT0}, s{sRB}, 1")
    a(f"s_mul_i32 s{sROT}, s{sT0}, {P['rot_x']}")
    a(f"s_and_b32 s{sT0}, s{sRB}, 1")
    a(f"s_mul_i32 s{sT0}, s{sT0}, {P['rot_j']}")
    a(f"s_add_u32 s{sROT}, s{sROT}, s{sT0}")
    a(f"s_mul_i32 s{sT0}, s{sHP}, {P['rot_h']}")
    a(f"s_add_u32 s{sROT}, s{sROT}, s{sT0}")
    a(f"s_lshl_b32 s{sXB}, s{sRB}, 18")
    a(f"s_lshl_b32 s{sWB}, s{sHP}, 7")

    def slice_ks(ks):
        a(f"s_add_u32 s{sT0}, s{sROT}, {ks}")
        a(f"s_and_b32 s{sT0}, s{sT0}, 15")

    def slice_w(ks):
        slot = (ks % 6) * SLOT
        a(f"s_lshl_b32 s{sSO}, s{sT0}, 17")
        a(f"s_add_u32 s{sSO}, s{sSO}, s{sWB}")
        for g in range(2):
            a(f"s_mov_b32 m0, {slot + 16384 + g*4096}")
            if g:
                a(f"s_add_u32 s{sSO}, s{sSO}, {32*2048}")
            else:
                a("s_nop 0")
            for j in range(4):
                a(f"buffer_load_dwordx4 v{lQW[j]}, {D(D_WQ)}, s{sSO} offen offset:{j*1024} lds")
                vm.add(f"q{ks}")

    def slice_x(ks):
        slot = (ks % 6) * SLOT
        a(f"s_lshl_b32 s{sSO}, s{sT0}, 7")
        for w in range(4):
            a(f"s_mov_b32 m0, {slot + w*4096}")
            a(f"s_add_u32 s{sSO}, s{sSO}, " + (f"s{sXB}" if w == 0 else "65536"))
            for j in range(4):
                a(f"buffer_load_dwordx4 v{lQX[j]}, {D(D_X)}, s{sSO} offen offset:{j*1024} lds")
                vm.add(f"q{ks}")

    def qslice(ks):
        slice_ks(ks)
        slice_w(ks)
        slice_x(ks)

    slice_ks(0)
    slice_w(0)
    a(f"s_cmp_eq_u32 s{sMAT}, 0")
    a(f"s_cselect_b32 s{D_WKV}, s{S_WK}, s{S_WV}")
    a(f"s_cselect_b32 s{D_WKV+1}, s{S_WK+1}, s{S_WV+1}")
    a(f"s_mov_b32 s{D_WKV+2}, 65536")
    a(f"s_mov_b32 s{D_WKV+3}, 0x20000")
    a(f"v_add_u32 v{lQX[2]}, {16*2048-2048}, v{lQX[0]}")
    a(f"v_add_u32 v{lQX[3]}, {16*2048-2048}, v{lQX[1]}")

    def wkv(q):
        for w in range(4):
            a(f"s_mov_b32 m0, {(2+w)*SLOT + 8192 + q*4096}")
            a(f"s_mov_b32 s{sSO}, {w*16384 + q*4096}")
            for j in range(4):
                a(f"buffer_load_dwordx4 v{vL16}, {D(D_WKV)}, s{sSO} offen offset:{j*1024} lds")
                vm.add(f"w{q}")

    wkv(0)
    if P["lstamp"]:
        stamp()
    vm.wait("xkv")
    if P["lstamp"]:
        stamp()
    wkv(1); wkv(2)
    vm.wait("w0")
    wkv(3)
    vm.wait("w1")
    stamp()
    a("s_barrier")
    slice_x(0)
    slice_ks(1)
    slice_w(1)
    vm.wait("w3")
    if P["lstamp"]:
        stamp()
    a("s_barrier")
    slice_x(1)
    srd(a, D_WS, S_WS, 16 << 20)
    srd(a, D_WO, S_WO, 1024 * 2048)
    srd(a, D_DBG, S_DBG, 256)
    a(f"v_lshlrev_b32 v14, 1, v5")
    a(f"v_xor_b32 v14, v4, v14")
    a(f"v_lshl_add_u32 v{lWO[0]}, v14, 4, v2")
    for j in range(1, 4):
        a(f"v_add_u32 v{lWO[j]}, {j*(8*2048-1024)}, v{lWO[0]}")
    for i in range(4):
        a(f"v_mov_b32 v{lPO+i}, -1")
    a("s_barrier")
    stamp()

    def kvunit(u, lo=0, hi=8):
        slot = ((3 + u) % 5) * 32768
        for t in range(lo, hi):
            a(f"s_mov_b32 m0, {slot + t*4096}")
            a(f"s_mov_b32 s{sSO}, {u*32768 + t*4096}")
            for j in range(4):
                a(f"buffer_load_dwordx4 v{vL16}, {D(D_WS)}, s{sSO} offen offset:{j*1024} sc1 lds")
                vm.add(f"u{u}")

    def wounit(i):
        for g in range(4 * i, 4 * i + 4):
            a(f"s_add_u32 s{sG}, s{sHP}, {g}")
            a(f"s_and_b32 s{sG}, s{sG}, 15")
            a(f"s_lshl_b32 s{sG}, s{sG}, 17")
            a(f"s_add_u32 s{sG}, s{sG}, s{sWB}")
            for hf in range(2):
                a(f"s_mov_b32 m0, {32768 + g*8192 + hf*4096}")
                if hf:
                    a(f"s_add_u32 s{sG}, s{sG}, {32*2048}")
                else:
                    a("s_nop 0")
                for j in range(4):
                    a(f"buffer_load_dwordx4 v{lWO[j]}, {D(D_WO)}, s{sG} offen offset:{j*1024} lds")
                    vm.add(f"wo{i}")

    nxt = 2
    for it in range(16):
        want = it + P["lead0"] - sum(1 for s_ in P["skip"] if s_ <= it)
        while nxt <= min(want, 15):
            assert nxt <= it + 4 or nxt <= 5
            if len(vm.q) > 39:
                vm.wait(vm.q[len(vm.q) - 40])
            qslice(nxt)
            nxt += 1
        if it == P["kv_it"] + 1:
            kvunit(0)
        if it == P["kv_it"] + 2:
            kvunit(1)
        vm.wait(f"q{it}")
        if P["lstamp"] and it in (0, 4, 8, 12, 15):
            stamp()
        a("s_barrier")
    assert nxt == 16
    if P["kv_it"] + 1 > 15:
        kvunit(0)
    if P["kv_it"] + 2 > 15:
        kvunit(1, 0, 6)
        vm.wait("u0")
        a("s_barrier")
        kvunit(1, 6, 8)
    else:
        vm.wait("u0")
        a("s_barrier")
    stamp()
    a(f"s_lshl_b32 s{sOOWN}, s{sHP}, 12")
    a(f"s_add_u32 s{sOOWN}, s{sOOWN}, s{sXB}")
    a(f"s_add_u32 s{sOOWN}, s{sOOWN}, {OBUF}")
    a(f"s_lshl_b32 s{sT0}, s{sRB}, 2")
    a(f"v_lshl_add_u32 v14, v{vLANE}, 8, s{sT0}")
    a(f"v_mov_b32 v5, 0x10000")
    for p in range(8):
        if p == 0:
            vm.wait("u1")
            kvunit(2)
            for w in range(4):
                for j in range(4):
                    a(f"buffer_store_dwordx4 {R(lPO,4)}, v{vL16}, {D(D_WS)}, s{sOOWN} offen offset:{j*1024} sc1")
                if w < 3:
                    a(f"s_add_u32 s{sOOWN}, s{sOOWN}, 65536")
        elif p == 1:
            a(f"buffer_atomic_add v5, v14, {D(D_DBG)}, 0 offen sc1")
            kvunit(3)
        elif p == 2:
            kvunit(4)
            vm.wait("u4")
            kvunit(5)
        elif p == 3:
            kvunit(6)
            vm.wait("u6")
            kvunit(7)
        else:
            wounit(p - 4)
        if p == 6:
            a.label("L_poll2")
            a(f"buffer_load_dword v5, v14, {D(D_DBG)}, 0 offen sc1")
            a(f"s_add_u32 s{sSPIN}, s{sSPIN}, 1")
            a("s_waitcnt vmcnt(0)")
            a(f"v_readfirstlane_b32 s{sT0}, v5")
            a(f"s_cmp_gt_u32 s{sSPIN}, 0x400000")
            a("s_cbranch_scc1 L_poll2x")
            a(f"s_cmp_lt_u32 s{sT0}, 0x100000")
            a("s_cbranch_scc1 L_poll2")
            a.label("L_poll2x")
        vm.drain()
        a("s_barrier")
    if P["diag"]:
        stamp()
        stamp_out("0")
    a("s_endpgm")

    a(".p2align 6")
    a.label("L_compute")
    vm = VM(a)
    nst[0] = 1
    a(f"s_sub_u32 s{sW}, s{sW}, 1")
    a(f"s_getpc_b64 s[{sPC}:{sPC+1}]")
    a.label("L_pc")
    a(f"s_sub_u32 s{sPC}, s{sPC}, L_pc-{NAME}")
    a(f"s_subb_u32 s{sPC+1}, s{sPC+1}, 0")
    a(f"s_lshl_b32 s{sT0}, s{sIDX}, 2")
    a(f"s_add_u32 s{sT0}, s{sT0}, s{sW}")
    a(f"s_mov_b64 exec, 7")
    a(f"v_lshl_add_u32 v3, v{vLANE}, 7, s{sT0}")
    a(f"v_lshlrev_b32 v3, 7, v3")
    a(f"v_min_u32 v3, L_end-{NAME}, v3")
    a(f"global_load_dword v{vDUM[0]}, v3, s[{sPC}:{sPC+1}]")
    vm.add("pf")
    a("s_mov_b64 exec, 0xff")
    a(f"s_and_b32 s{sT0}, s{sT0}, 63")
    a(f"s_lshl_b32 s{sT0}, s{sT0}, 10")
    a(f"v_lshl_add_u32 v3, v{vLANE}, 7, s{sT0}")
    a(f"s_cmp_lt_u32 s{sIDX}, 16")
    a("s_waitcnt lgkmcnt(0)")
    if P["touch"]:
        a(f"s_cselect_b32 s{sT2}, s{S_WK}, s{S_WV}")
        a(f"s_cselect_b32 s{sT3}, s{S_WK+1}, s{S_WV+1}")
        a(f"global_load_dword v{vDUM[1]}, v3, s[{sT2}:{sT3}]")
        vm.add("pf")
    a("s_mov_b64 exec, -1")
    if P["diag"]:
        a(f"v_writelane_b32 v{vSTAMP}, s{sTM}, 0")
    srd(a, D_WS, S_WS, 16 << 20)
    srd(a, D_DBG, S_DBG, 256)
    srd(a, D_OUT, S_OUT, 2048 * 2048)
    a(f"s_lshl_b32 s{sXB}, s{sRB}, 2")
    a(f"s_add_u32 s{sXB}, s{sXB}, s{sW}")
    a(f"s_lshl_b32 s{sXB}, s{sXB}, 16")
    a(f"s_lshl_b32 s{sT0}, s{sHP}, 7")
    a(f"s_add_u32 s{sOUTB}, s{sXB}, s{sT0}")
    a(f"s_add_u32 s{sOROW}, s{sXB}, {OBUF}")
    for g in range(16):
        a(f"s_add_u32 s{sT0}, s{sHP}, {g}")
        a(f"s_and_b32 s{sT0}, s{sT0}, 15")
        a(f"s_lshl_b32 s{sT0}, s{sT0}, 12")
        a(f"s_add_u32 s{sOG+g}, s{sT0}, s{sOROW}")
    a(f"s_mul_i32 s{sT1}, s{sW}, {SLOT}")
    a(f"s_add_u32 s{sT1}, s{sT1}, {2*SLOT}")
    a(f"v_lshrrev_b32 v3, 4, v{vLANE}")
    a(f"v_and_b32 v2, 15, v{vLANE}")
    a(f"v_lshrrev_b32 v4, 1, v2")
    a(f"v_xor_b32 v4, v4, v3")
    a(f"v_lshlrev_b32 v4, 4, v4")
    a(f"v_lshl_add_u32 v4, v2, 7, v4")
    a(f"v_add_u32 v{vKRX[0]}, s{sT1}, v4")
    a(f"v_xor_b32 v{vKRX[1]}, 64, v{vKRX[0]}")
    a(f"v_lshrrev_b32 v4, 2, v2")
    a(f"v_lshl_add_u32 v5, v3, 3, v4")
    a(f"v_lshlrev_b32 v5, 6, v5")
    a(f"v_and_b32 v2, 3, v{vLANE}")
    a(f"v_lshl_add_u32 v5, v2, 3, v5")
    a(f"s_add_u32 s{sT0}, s{sT1}, 8192")
    a(f"v_add_u32 v{vKRW}, s{sT0}, v5")
    a(f"v_lshrrev_b32 v16, 5, v{vLANE}")
    a(f"v_lshl_add_u32 v5, v16, 3, v4")
    a(f"v_lshlrev_b32 v5, 7, v5")
    a(f"v_lshl_add_u32 v5, v2, 3, v5")
    a(f"v_and_b32 v17, 1, v3")
    a(f"v_lshl_add_u32 v5, v17, 5, v5")
    a(f"v_lshrrev_b32 v18, 1, v4")
    a(f"v_lshl_add_u32 v5, v18, 6, v5")
    a(f"v_add_u32 v{vRW[0]}, 16384, v5")
    a(f"v_xor_b32 v{vRW[1]}, 64, v{vRW[0]}")
    a(f"v_lshl_add_u32 v5, v16, 2, v4")
    a(f"v_lshlrev_b32 v5, 7, v5")
    a(f"v_and_b32 v19, 1, v2")
    a(f"v_lshl_add_u32 v5, v19, 6, v5")
    a(f"v_lshl_add_u32 v5, v18, 5, v5")
    a(f"v_lshl_add_u32 v5, v17, 4, v5")
    a(f"v_lshrrev_b32 v20, 1, v2")
    a(f"v_lshl_add_u32 v5, v20, 3, v5")
    a(f"v_add_u32 v{vWR[0]}, 32768, v5")
    a(f"v_xor_b32 v{vWR[1]}, 32, v{vWR[0]}")
    a(f"v_add_u32 v{vWR[2]}, 65536, v{vWR[0]}")
    a(f"v_add_u32 v{vWR[3]}, 65536, v{vWR[1]}")
    a(f"s_lshl_b32 s{sT4}, s{sW}, 12")
    a(f"v_and_b32 v5, 31, v{vLANE}")
    a(f"v_bfe_u32 v21, v5, 1, 3")
    a(f"v_xor_b32 v21, v21, v16")
    a(f"v_lshlrev_b32 v21, 4, v21")
    a(f"v_lshl_add_u32 v21, v5, 7, v21")
    a(f"v_add_u32 v{vRX[0]}, s{sT4}, v21")
    for t in range(1, 4):
        a(f"v_xor_b32 v{vRX[t]}, {32*t}, v{vRX[0]}")
    a(f"v_and_b32 v21, 7, v{vLANE}")
    a(f"v_lshlrev_b32 v22, 2, v16")
    a(f"v_xor_b32 v22, v22, v21")
    a(f"v_lshlrev_b32 v22, 4, v22")
    a(f"v_lshl_add_u32 v22, v5, 7, v22")
    a(f"v_add_u32 v{vTW}, s{sT4}, v22")
    a(f"v_lshrrev_b32 v22, 3, v{vLANE}")
    a(f"v_xor_b32 v23, v22, v21")
    a(f"v_lshlrev_b32 v23, 4, v23")
    a(f"v_lshl_add_u32 v23, v22, 7, v23")
    a(f"v_add_u32 v{vTR}, s{sT4}, v23")
    a(f"v_lshlrev_b32 v22, 11, v22")
    a(f"v_lshl_add_u32 v{vOUT}, v21, 4, v22")
    a(f"s_lshr_b32 s{sT0}, s{sW}, 1")
    a(f"s_and_b32 s{sT2}, s{sW}, 1")
    a(f"s_lshr_b32 s{sCNT}, s{sKEY16}, 1")
    a(f"s_lshl_b32 s{sKVST}, s{sCNT}, 12")
    a(f"s_and_b32 s{sT3}, s{sKEY16}, 1")
    a(f"s_cmp_eq_u32 s{sMAT}, 0")
    a(f"s_cselect_b32 s{sSO}, s{sT0}, s{sT2}")
    a(f"s_cselect_b32 s{sG}, s{sT2}, s{sT0}")
    a(f"s_cselect_b32 s{sT0}, 8, 9")
    a(f"s_cselect_b32 s{sT2}, 9, 8")
    a(f"s_cselect_b32 s{sT4}, 8, 10")
    a(f"s_cselect_b32 s{sWB}, 0, 2048")
    a(f"s_cselect_b32 s{sSC}, {hex(f2u(math.log2(math.e) / math.sqrt(32.0)))}, 1.0")
    a(f"s_lshl_b32 s{sSO}, s{sSO}, 10")
    a(f"s_lshl_b32 s{sG}, s{sG}, s{sT0}")
    a(f"s_add_u32 s{sSO}, s{sSO}, s{sG}")
    a(f"s_add_u32 s{sSO}, s{sSO}, {RED}")
    a(f"v_lshrrev_b32 v4, 2, v{vLANE}")
    a(f"v_lshlrev_b32 v4, 4, v4")
    a(f"v_lshl_add_u32 v4, v19, 3, v4")
    a(f"v_lshlrev_b32 v5, s{sT2}, v20")
    a(f"v_add3_u32 v{vRED}, v4, v5, s{sSO}")
    a(f"s_lshl_b32 s{sT0}, s{sW}, s{sT2}")
    a(f"s_lshl_b32 s{sT3}, s{sT3}, s{sT4}")
    a(f"s_add_u32 s{sKVST}, s{sKVST}, s{sWB}")
    a(f"s_add_u32 s{sKVST}, s{sKVST}, s{sT0}")
    a(f"s_add_u32 s{sKVST}, s{sKVST}, s{sT3}")
    a(f"v_lshlrev_b32 v{vL4}, 2, v{vLANE}")
    a(f"s_lshl_b32 s{sCNT}, s{sCNT}, 2")
    a(f"s_lshl_b32 s{sT2}, s{sW}, 11")
    a(f"s_add_u32 s{sT2}, s{sT2}, {RED}")
    a(f"v_add_u32 v{vPW}, s{sT2}, v{vL16}")
    a(f"v_mov_b32 v{vIDX}, 0xdddddddd")
    a(f"v_mov_b32 v{vAB[0]}, v{vL16}")
    a(f"v_add_u32 v{vAB[1]}, 65536, v{vL16}")
    a(f"v_add_u32 v{vAB[2]}, 131072, v{vL16}")
    a(f"v_bfe_u32 v4, v{vLANE}, 2, 1")
    a(f"v_mov_b32 v5, 0x3f803f80")
    if P["lrows"] == 2:
        a(f"v_and_b32 v2, 11, v{vLANE}")
    if P["lrows"] <= 4:
        a(f"v_cmp_eq_u32 vcc, 0, v2")
        a("s_nop 1")
        a(f"v_cndmask_b32 v5, 0, v5, vcc")
    a(f"v_mul_lo_u32 v{vONES+2}, v4, v5")
    a(f"v_mov_b32 v{vONES+3}, v{vONES+2}")
    a(f"v_sub_u32 v{vONES}, v5, v{vONES+2}")
    a(f"v_mov_b32 v{vONES+1}, v{vONES}")
    for i in range(vO[0], vL[1] + 4):
        a(f"v_mov_b32 v{i}, 0")
    XF, WF, KA = 16, 48, 112

    def kv_reads(t):
        a(f"ds_read_b128 {R(XF+4*t,4)}, v{vKRX[t&1]} offset:{(t>>1)*2048}")
        for dt in range(2):
            for u in range(2):
                a(f"ds_read_b64_tr_b16 {R(WF+8*t+4*dt+2*u,2)}, v{vKRW} offset:{t*2048+u*256+dt*32}")

    def kv_mfma(t, mat):
        for dt in range(2):
            w, x = R(WF + 8 * t + 4 * dt, 4), R(XF + 4 * t, 4)
            A, B = (w, x) if mat == 0 else (x, w)
            c = "0" if t == 0 else R(KA + 4 * dt, 4)
            a(f"v_mfma_f32_16x16x32_bf16 {R(KA+4*dt,4)}, {A}, {B}, {c}")

    a(f"s_cmp_eq_u32 s{sMAT}, 0")
    a("s_cbranch_scc0 L_vmat")
    for mat in range(2):
        if mat:
            a.label("L_vmat")
        for half in range(2):
            a("s_barrier")
            t0 = 4 * half
            kv_reads(t0); kv_reads(t0 + 1); kv_reads(t0 + 2)
            a("s_waitcnt lgkmcnt(10)")
            kv_mfma(t0, mat)
            kv_reads(t0 + 3)
            a("s_waitcnt lgkmcnt(10)")
            kv_mfma(t0 + 1, mat)
            a("s_waitcnt lgkmcnt(5)")
            kv_mfma(t0 + 2, mat)
            a("s_waitcnt lgkmcnt(0)")
            kv_mfma(t0 + 3, mat)
        if mat == 0:
            a("s_branch L_kvdone")
    a.label("L_kvdone")
    a("s_nop 6")
    a(f"ds_write_b128 v{vPW}, {R(KA,4)}")
    a(f"ds_write_b128 v{vPW}, {R(KA+4,4)} offset:1024")
    a("s_waitcnt lgkmcnt(0)")
    a("s_barrier")
    for p in range(4):
        a(f"ds_read_b64 {R(112+2*p,2)}, v{vRED} offset:{p*2048}")
    a("s_waitcnt lgkmcnt(2)")
    a("v_add_f32 v112, v112, v114")
    a("v_add_f32 v113, v113, v115")
    a("s_waitcnt lgkmcnt(0)")
    a("v_add_f32 v116, v116, v118")
    a("v_add_f32 v117, v117, v119")
    a("v_add_f32 v112, v112, v116")
    a("v_add_f32 v113, v113, v117")
    a(f"v_mul_f32 v112, s{sSC}, v112")
    a(f"v_mul_f32 v113, s{sSC}, v113")
    a("v_cvt_pk_bf16_f32 v4, v112, v113")
    a(f"buffer_store_dword v4, v{vL4}, {D(D_WS)}, s{sKVST} offen sc1")
    stamp()
    QB = [16, 64]

    def q_read_list(ks):
        b = QB[ks & 1]
        off = (ks % 2) * SLOT
        L = []
        for t in range(4):
            L.append(f"ds_read_b128 {R(b+4*t,4)}, v{vRX[t]} offset:{off}")
            for hd in range(2):
                for u in range(2):
                    L.append(f"ds_read_b64_tr_b16 {R(b+16+8*t+4*hd+2*u,2)}, v{vRW[hd]} offset:{off+t*2048+u*512}")
        return L

    def q_mfma_list(ks):
        b = QB[ks & 1]
        L = []
        for t in range(4):
            for hd in range(2):
                c = "0" if (ks == 0 and t == 0) else R(vQA[hd], 16)
                L.append(f"v_mfma_f32_32x32x16_bf16 {R(vQA[hd],16)}, {R(b+16+8*t+4*hd,4)}, {R(b+4*t,4)}, {c}")
        return L

    for it in range(16):
        if it == P["kv_it"]:
            a(f"s_cmp_lg_u32 s{sW}, 0")
            a("s_cbranch_scc1 L_spun")
            a("s_waitcnt vmcnt(0)")
            a(f"v_and_b32 v{vPOLL}, 0xffff, v{vPOLL}")
            a(f"v_cmp_gt_u32 vcc, 4, v{vPOLL}")
            a("s_cbranch_vccnz L_spin")
            a.label("L_spun")
        a("s_waitcnt vmcnt(0) lgkmcnt(0)" if it == P["flag_it"] else "s_waitcnt lgkmcnt(0)")
        a("s_barrier")
        if P["qstamp"] and it in (0, 4, 8, 12):
            stamp()
        reads = q_read_list(it)
        mf = q_mfma_list(it - 1) if it >= 1 else []
        last = it == 15
        n = max(len(mf), 1)
        ri = 0
        for m in range(n):
            if mf:
                a(mf[m])
            rt = min(len(reads), (len(reads) * (m + 1) + 5) // 6) if mf else len(reads)
            while ri < rt:
                if ri == 15:
                    a("s_waitcnt lgkmcnt(10)")
                a(reads[ri])
                ri += 1
        if it % 2 == 1 and not last:
            d = 2 * SLOT if it % 6 != 5 else -4 * SLOT
            for v in vRX + vRW:
                a(f"v_add_u32 v{v}, {d}, v{v}")
        if it in (P["flag_it"], P["poll_it"]):
            a(f"s_cmp_lg_u32 s{sW}, 0")
            a(f"s_cbranch_scc1 L_nf{it}")
            if it == P["flag_it"]:
                a("s_mov_b64 exec, 1")
                a(f"v_mov_b32 v2, s{sCNT}")
                a("v_mov_b32 v3, 1")
                a(f"buffer_atomic_add v3, v2, {D(D_DBG)}, 0 offen sc1")
                a("s_mov_b64 exec, -1")
            else:
                a(f"buffer_load_dword v{vPOLL}, v{vL4}, {D(D_DBG)}, 0 offen sc1")
            a.label(f"L_nf{it}")
    mf = q_mfma_list(15)
    a("s_waitcnt lgkmcnt(0)")
    for m in (0, 2, 4, 6, 1, 3, 5, 7):
        a(mf[m])
    stamp()
    a("s_barrier")

    def kvread(inst, tt, f):
        addr = ((3 + (tt >> 3)) % 5) * 32768 + (tt & 7) * 4096 + f * 1024
        return f"ds_read_b128 {R(vKVB[inst&1]+4*f,4)}, v{vAB[addr>>16]} offset:{addr&0xffff}"

    def qk(q, sb, kb, s, czero=False):
        c = R(sb, 16) if s else ("0" if (czero or P["czero"]) else R(vC[q], 16))
        return f"v_mfma_f32_32x32x16_bf16 {R(sb,16)}, {R(kb+4*s,4)}, {R(vQ[q]+4*s,4)}, {c}"

    def pv(q, sb, kb, s):
        return f"v_smfmac_f32_32x32x32_bf16 {R(vO[q],16)}, {R(kb+8+4*s,4)}, {R(sb+8*s,8)}, v{vIDX}"

    def ls(q, sb, s):
        return f"v_smfmac_f32_16x16x64_bf16 {R(vL[q],4)}, {R(vONES,4)}, {R(sb+8*s,8)}, v{vIDX}"

    def rowmax_tree(s, dst, first):
        if first:
            a(f"v_max3_f32 v{dst}, v{s}, v{s+1}, v{s+2}")
            k = 3
        else:
            k = 0
        while k + 1 < 16:
            a(f"v_max3_f32 v{dst}, v{dst}, v{s+k}, v{s+k+1}")
            k += 2
        if k < 16:
            a(f"v_max_f32 v{dst}, v{dst}, v{s+k}")

    def cfill(q, m, t):
        a(f"v_mov_b32 v{t}, v{m}")
        a("s_nop 1")
        a(f"v_permlane32_swap_b32 v{m}, v{t}")
        a(f"v_min_f32_e64 v{vC[q]}, -v{m}, -v{t}")
        a(f"v_min_f32_e64 v{vC[q]+1}, -v{m}, -v{t}")
        for i in range(2, 16, 2):
            a(f"v_mov_b64 {R(vC[q]+i,2)}, {R(vC[q],2)}")

    for f in range(4):
        a(kvread(0, 0, f))
    a(kvread(1, 1, 0))
    a("s_nop 1")
    for i in range(8):
        a(f"v_cvt_pk_bf16_f32 v{vQ[0]+i}, v{vQA[0]+2*i}, v{vQA[0]+2*i+1}")
    a("s_waitcnt lgkmcnt(3)")
    a("s_nop 0")
    a(qk(0, vS[0], vKVB[0], 0, True))
    a(qk(0, vS[0], vKVB[0], 1))
    for i in range(8):
        a(f"v_cvt_pk_bf16_f32 v{vQ[1]+i}, v{vQA[1]+2*i}, v{vQA[1]+2*i+1}")
    a("s_nop 1")
    a(qk(1, vS[1], vKVB[0], 0, True))
    a(qk(1, vS[1], vKVB[0], 1))
    rowmax_tree(vS[0], 2, True)
    cfill(0, 2, 3)
    a("s_nop 1")
    a(qk(0, vS[0], vKVB[0], 0))
    a(qk(0, vS[0], vKVB[0], 1))
    rowmax_tree(vS[1], 4, True)
    cfill(1, 4, 5)
    stamp()

    def finish_head(q, inter=()):
        inter = list(inter)
        o = vO[q]
        if P["lrows"] == 2:
            a(f"v_mov_b32 v3, v{vL[q]}")
            a("s_nop 1")
            a(f"v_permlane32_swap_b32 v{vL[q]}, v3")
        a(f"v_pk_add_f32 v[2:3], {R(o,2)}, {R(o+2,2)}")
        for i in range(4, 16, 2):
            a(f"v_pk_add_f32 v[2:3], v[2:3], {R(o+i,2)}")
        a(f"v_cmp_nge_f32 vcc, s{sT0}, v{vL[q]}")
        a("v_add_f32 v2, v2, v3")
        a(f"v_cmp_class_f32 s[{sT2}:{sT3}], v2, s{sT1}")
        a(f"s_or_b64 vcc, vcc, s[{sT2}:{sT3}]")
        a(f"s_branch L_truemax{q}" if P["force_fb"] else f"s_cbranch_vccnz L_truemax{q}")
        a.label(f"L_norm{q}")
        a(f"v_rcp_f32 v2, v{vL[q]}")
        if inter:
            inter.pop(0)()
        else:
            a("s_nop 0")
        for s in range(2):
            for i in range(8 * s, 8 * s + 8):
                a(f"v_mul_f32 v{o+i}, v2, v{o+i}")
            if inter:
                inter.pop(0)()
            for i in range(4 * s, 4 * s + 4):
                a(f"v_cvt_pk_bf16_f32 v{vOWN+8*q+i}, v{o+2*i}, v{o+2*i+1}")
            for i in range(4 * s, 4 * s + 4):
                a(f"v_min_u32 v{vOWN+8*q+i}, -2, v{vOWN+8*q+i}")
            if inter:
                inter.pop(0)()
        while inter:
            inter.pop(0)()
        for s in range(2):
            f = 2 * q + s
            a(f"buffer_store_dwordx4 {R(vOWN+4*f,4)}, v{vL16}, {D(D_WS)}, s{sOG} offen offset:{f*1024} sc1")
            vm.add("ost")

    vm.q.clear()
    a(f"s_mov_b32 s{sT0}, {hex(f2u(2.0**60))}")
    a(f"s_movk_i32 s{sT1}, 0x207")
    steps = [(n & 1, n >> 1, n >> 1) for n in range(112)]
    steps += [(0, 56 + j, 56 + j) for j in range(8)] + [(1, 56 + j, 64 + j) for j in range(8)]
    tile_of = {i: t for (_, t, i) in steps}
    rd1 = {n: [] for n in range(128)}
    rd0 = {n: [] for n in range(128)}
    for n in range(110):
        t = n >> 1
        if n & 1 == 0:
            rd1[n] = [(t + 1, 1)]; rd0[n] = [(t + 1, 2)]
        else:
            rd1[n] = [(t + 1, 3)]; rd0[n] = [(t + 2, 0)]
    rd1[110] = [(56, 1)]; rd0[110] = [(56, 2), (56, 3)]
    for n in range(111, 128):
        if n + 2 < 128:
            rd1[n] = [(steps[n + 2][2], 0), (steps[n + 2][2], 1)]
        if n >= 112 and n + 1 < 128:
            rd0[n] = [(steps[n + 1][2], 2), (steps[n + 1][2], 3)]
    items = []
    for n in range(128):
        q, t, ins = steps[n]
        sb = vS[n & 1]
        so = vS[(n + 1) & 1]
        ex = [("i", f"v_exp_f32 v{sb+i}, v{sb+i}", None) for i in range(16)]
        items += ex[0:2]
        if n > 0:
            pq, _, pi_ = steps[n - 1]
            items.append(("i", pv(pq, so, vKVB[pi_ & 1], 1), (pi_, 3)))
        items.append(("w",))
        items += ex[2:5]
        if n > 0:
            items.append(("i", ls(pq, so, 1), None))
        items += [("r",) + r for r in rd1[n]]
        items += ex[5:7]
        if n < 127:
            nq, _, ni = steps[n + 1]
            items.append(("i", qk(nq, so, vKVB[ni & 1], 0), (ni, 0)))
        items += ex[7:10]
        if n < 127:
            items.append(("i", qk(nq, so, vKVB[ni & 1], 1), (ni, 1)))
        items.append(("w",) if n >= 111 else ("i", "s_nop 0", None))
        items += ex[10:13]
        items.append(("i", pv(q, sb, vKVB[ins & 1], 0), (ins, 2)))
        if (n + 3) % 16 == 0 and n < 125:
            items.append(("bar",))
        else:
            items.append(("i", "s_nop 1", None))
        items += ex[13:16]
        items.append(("i", ls(q, sb, 0), None))
        if rd0[n]:
            items += [("r",) + r for r in rd0[n]]
        else:
            items.append(("i", "s_nop 0", None))
        if n == 120:
            items.append(("call", lambda: finish_head(0)))
    items.append(("i", "s_nop 0", None))
    items.append(("i", pv(1, vS[1], vKVB[71 & 1], 1), (71, 3)))
    items.append(("i", ls(1, vS[1], 1), None))
    issued = [(0, 2), (0, 3), (1, 0)]
    content = {(0, 0): (0, 0), (0, 1): (0, 1)}
    for k, it_ in enumerate(items):
        if it_[0] == "i":
            if it_[2] is not None:
                ins, f = it_[2]
                assert content.get((ins & 1, f)) == (ins, f), (k, it_, content.get((ins & 1, f)))
            a(it_[1])
        elif it_[0] == "r":
            _, ins, f = it_
            content.pop((ins & 1, f), None)
            issued.append((ins, f))
            assert len(issued) <= 15
            a(kvread(ins, tile_of[ins], f))
        elif it_[0] == "call":
            it_[1]()
        else:
            if it_[0] == "bar":
                keep = 0
            else:
                needs = []
                for j in range(k + 1, len(items)):
                    if items[j][0] in ("w", "bar"):
                        break
                    if items[j][0] == "i" and items[j][2] is not None:
                        needs.append(items[j][2])
                pos = [issued.index(x) for x in needs if x in issued]
                keep = len(issued) - 1 - max(pos) if pos else None
            if keep is None:
                a("s_nop 0")
            else:
                a(f"s_waitcnt lgkmcnt({keep})")
                for (ins, f) in issued[: len(issued) - keep]:
                    content[(ins & 1, f)] = (ins, f)
                del issued[: len(issued) - keep]
            if it_[0] == "bar":
                a("s_barrier")
    a("s_barrier")
    stamp()
    order = [(0, f) for f in range(4)] + [(g, f) for g in range(1, 16) for f in (0, 1)] + [(g, f) for g in range(1, 16) for f in (2, 3)]

    def freg(y):
        return vOWN + 4 * y if y < 4 else RING[(y - 4) % len(RING)]

    def oload(y):
        g, f = order[y]
        return f"buffer_load_dwordx4 {R(freg(y),4)}, v{vL16}, {D(D_WS)}, s{sOG+g} offen offset:{f*1024} sc1"

    def wo_reads(y):
        g, f = order[y]
        return [f"ds_read_b64_tr_b16 {R(vWF + 8*(y&3) + 4*T + 2*u, 2)}, v{vWR[T + 2*(g>>3)]} offset:{(g&7)*8192 + f*2048 + u*1024}"
                for T in range(2) for u in range(2)]

    def omf(y, T):
        c = "0" if y == 0 else R(vACC[T], 16)
        return f"v_mfma_f32_32x32x16_bf16 {R(vACC[T],16)}, {R(vWF + 8*(y&3) + 4*T, 4)}, {R(freg(y),4)}, {c}"

    def chk(y):
        f = freg(y)
        if y & 3 == 0:
            return [f"v_max_u32 v{vMX}, v{f}, v{f+1}", f"v_max3_u32 v{vMX}, v{vMX}, v{f+2}, v{f+3}"]
        return [f"v_max3_u32 v{vMX}, v{vMX}, v{f}, v{f+1}", f"v_max3_u32 v{vMX}, v{vMX}, v{f+2}, v{f+3}"]

    nx = [4]

    def issue_load():
        a(oload(nx[0]))
        vm.add(f"o{nx[0]}")
        nx[0] += 1

    assert P["early"] + P["mid"] <= 16
    for _ in range(P["early"]):
        issue_load()
    if P["early"] < 11:
        a(f"s_nop {10 - P['early']}")
    finish_head(1, [issue_load] * P["mid"])
    WLA = P["wla"]
    for y in range(WLA):
        for t in wo_reads(y):
            a(t)
    for y in range(64):
        rd = wo_reads(y + WLA) if y + WLA < 64 else []
        ck = chk(y + 4) if y + 4 < 64 else []
        a(f"s_waitcnt lgkmcnt({4 * min(WLA - 1, 63 - y)})")
        a(omf(y, 0))
        if nx[0] < 64 and nx[0] <= y + 4 + P["la"]:
            issue_load()
        for t in rd[:2]:
            a(t)
        a(omf(y, 1))
        for t in rd[2:]:
            a(t)
        if ck:
            vm.wait(f"o{y+4}")
            for t in ck:
                a(t)
            if y & 3 == 3:
                i = (y + 4) >> 2
                a(f"v_cmp_eq_u32 vcc, -1, v{vMX}")
                a(f"s_cbranch_vccnz L_retry{i}")
                a.label(f"L_ok{i}")
    assert nx[0] == 64
    stamp()
    a("s_nop 10")
    PK = 48
    for T in range(2):
        for z in range(2):
            for m in range(4 * z, 4 * z + 4):
                a(f"v_cvt_pk_bf16_f32 v{PK+8*T+m}, v{vACC[T]+2*m}, v{vACC[T]+2*m+1}")
            if T or z:
                a(f"v_xor_b32 v2, {16*(2*T+z)}, v{vTW}")
            a(f"ds_write_b128 v{2 if (T or z) else vTW}, {R(PK+8*T+4*z,4)}")
    a("s_waitcnt lgkmcnt(0)")
    for j in range(4):
        a(f"ds_read_b128 {R(64+4*j,4)}, v{vTR} offset:{j*1024}")
    pol = (" " + P["outpol"]) if P["outpol"] else ""
    for j in range(4):
        a(f"s_waitcnt lgkmcnt({3-j})")
        a(f"buffer_store_dwordx4 {R(64+4*j,4)}, v{vOUT}, {D(D_OUT)}, s{sOUTB} offen{pol}")
        if j < 3:
            a(f"s_add_u32 s{sOUTB}, s{sOUTB}, 16384")
    if P["diag"]:
        a("s_waitcnt vmcnt(0)")
        stamp()
        assert nst[0] <= 15
        a(f"s_add_u32 s{sW}, s{sW}, 1")
        stamp_out(f"s{sW}")
    a("s_endpgm")

    a.label("L_spin")
    a(f"buffer_load_dword v{vPOLL}, v{vL4}, {D(D_DBG)}, 0 offen sc1")
    a(f"s_add_u32 s{sSPIN}, s{sSPIN}, {1024 if P['diag'] else 1}")
    a(f"s_cmp_gt_u32 s{sSPIN}, 0x400000")
    a("s_waitcnt vmcnt(0)")
    a("s_cbranch_scc1 L_spun")
    a(f"v_and_b32 v{vPOLL}, 0xffff, v{vPOLL}")
    a(f"v_cmp_gt_u32 vcc, 4, v{vPOLL}")
    a("s_cbranch_vccnz L_spin")
    a("s_branch L_spun")
    for i in range(1, 16):
        a.label(f"L_retry{i}")
        for y in range(4 * i, 4 * i + 4):
            a(oload(y))
        a(f"s_add_u32 s{sSPIN}, s{sSPIN}, 1")
        a(f"s_cmp_gt_u32 s{sSPIN}, 0x400000")
        a("s_waitcnt vmcnt(0)")
        a(f"s_cbranch_scc1 L_ok{i}")
        for y in range(4 * i, 4 * i + 4):
            for t in chk(y):
                a(t)
        a(f"v_cmp_eq_u32 vcc, -1, v{vMX}")
        a(f"s_cbranch_vccnz L_retry{i}")
        a(f"s_branch L_ok{i}")
    for q in range(2):
        sb, kb = (192, 208) if q == 0 else (vS[0], vKVB[0])
        a.label(f"L_truemax{q}")
        a("v_mov_b32 v2, 0xff800000")
        a(f"s_mov_b32 s{sCNT}, 0")
        a.label(f"L_tm1{q}")
        for f in range(2):
            a(f"buffer_load_dwordx4 {R(kb+4*f,4)}, v{vL16}, {D(D_WS)}, s{sCNT} offen offset:{f*1024} sc1")
        a("s_waitcnt vmcnt(0)")
        a(qk(q, sb, kb, 0, True)); a(qk(q, sb, kb, 1))
        a("s_nop 15")
        rowmax_tree(sb, 2, False)
        a(f"s_add_u32 s{sCNT}, s{sCNT}, 4096")
        a(f"s_cmp_lt_u32 s{sCNT}, {64*4096}")
        a(f"s_cbranch_scc1 L_tm1{q}")
        cfill(q, 2, 3)
        for i in range(16):
            a(f"v_mov_b32 v{vO[q]+i}, 0")
        for i in range(4):
            a(f"v_mov_b32 v{vL[q]+i}, 0")
        a(f"s_mov_b32 s{sCNT}, 0")
        a.label(f"L_tm2{q}")
        for f in range(4):
            a(f"buffer_load_dwordx4 {R(kb+4*f,4)}, v{vL16}, {D(D_WS)}, s{sCNT} offen offset:{f*1024} sc1")
        a("s_waitcnt vmcnt(0)")
        a(qk(q, sb, kb, 0)); a(qk(q, sb, kb, 1))
        a("s_nop 15")
        for i in range(16):
            a(f"v_exp_f32 v{sb+i}, v{sb+i}")
        a("s_nop 1")
        for s in range(2):
            a(pv(q, sb, kb, s)); a(ls(q, sb, s))
        a(f"s_add_u32 s{sCNT}, s{sCNT}, 4096")
        a(f"s_cmp_lt_u32 s{sCNT}, {64*4096}")
        a("s_nop 15")
        a(f"s_cbranch_scc1 L_tm2{q}")
        if P["lrows"] == 2:
            a(f"v_mov_b32 v3, v{vL[q]}")
            a("s_nop 1")
            a(f"v_permlane32_swap_b32 v{vL[q]}, v3")
        a(f"s_branch L_norm{q}")
    a.label("L_end")
    a("s_endpgm")

    bad = a.check()
    for b in bad[:8]:
        print("HAZARD", b, file=sys.stderr)
    assert not bad, f"{len(bad)} hazards"

    head = open(os.path.join(os.path.dirname(os.path.abspath(__file__)), "..", "cdna_kernels", "standalone__grouped_kv_mqa__prompt.s.ref")).read().split("\n")
    hdr = [l for l in head if l.startswith(";") and "@launch" not in l and "Override" not in l and "grid=ceil" not in l]
    out = "\n".join(hdr) + f"\n; @launch grid=(256,1,1) block=(320,1,1) lds={LDS_BYTES}\n"
    out += f""".amdgcn_target "amdgcn-amd-amdhsa--gfx950"
.text
.globl {NAME}
.p2align 8
.type {NAME},@function
{NAME}:
"""
    out += a.text()
    out += f""".section .rodata,"a"
.p2align 6
.amdhsa_kernel {NAME}
  .amdhsa_next_free_vgpr 256
  .amdhsa_next_free_sgpr 102
  .amdhsa_accum_offset 256
  .amdhsa_group_segment_fixed_size 0
  .amdhsa_kernarg_size 64
  .amdhsa_user_sgpr_count 2
  .amdhsa_user_sgpr_kernarg_segment_ptr 1
  .amdhsa_system_sgpr_workgroup_id_x 1
.end_amdhsa_kernel
"""
    return out


if __name__ == "__main__":
    path = sys.argv[1]
    kw = {}
    for arg in sys.argv[2:]:
        k, v = arg.split("=")
        if k in ("mode", "outpol"):
            kw[k] = v
        elif k == "skip":
            kw[k] = tuple(int(x) for x in v.split(",") if x)
        else:
            kw[k] = int(v)
    open(path, "w").write(gen(**kw))
```

```python
import sys, math, struct, os
sys.path.insert(0, os.path.dirname(os.path.abspath(__file__)))
from asmlib import Asm, R

NAME = "standalone__grouped_kv_mqa__prompt_kernel"


def f2u(x):
    return struct.unpack("<I", struct.pack("<f", x))[0]


DEFAULTS = dict(
    diag=0,
    mode="A",
    rot_h=0, rot_x=1, rot_j=8, rot_y=0,
    force_fb=0,
    flag_it=3, poll_it=11, kv_it=13, xfirst=0, qlag=2, estamp=0, wq0at=48, ntile0=2,
    lead0=3, skip=(3, 6),
    early=7, mid=0, la=10, pre=0, J=8, bar8=20, astamp=0, dense=0, g16=0, stubs=1, po_at=1,
    xnt=0, touch=1, lrows=4, outpol="sc1", qstamp=0, czero=0, wla=3, lstamp=0,
)

S_X, S_WQ, S_WK, S_WV, S_WO, S_OUT, S_DBG, S_WS = 4, 6, 8, 10, 12, 14, 16, 18
D_X, D_WQ, D_WKV, D_WO, D_OUT, D_DBG, D_WS = 20, 24, 28, 32, 36, 40, 44
sW, sXCD, sIDX, sRB, sHP, sKEY16, sMAT, sROT = 48, 49, 50, 51, 52, 53, 54, 55
sT0, sT1, sT2, sT3 = 56, 57, 58, 59
sXB, sWB, sKVST, sOOWN, sOROW, sOUTB = 60, 61, 62, 63, 64, 65
sSO, sSPIN, sG, sCNT, sSC, sT4 = 66, 67, 68, 69, 70, 71
sPC = 72
sTM = 74
sOG = 80

vLANE, vL16 = 0, 1
vWR = [6, 7, 8, 9]
vOUT, vMX, vTW, vTR, vPOLL, vSTAMP = 10, 11, 12, 13, 14, 15
vS = [16, 32]
vC = [48, 64]
vQ = [80, 88]
vKVB = [96, 112]
vONES, vIDX = 128, 132
vAB = [133, 134, 135]
vO = [136, 152]
vL = [168, 172]
vOWN = 176
vRX = [176, 177, 178, 179]
vRW = [180, 181]
vKRX = [182, 183]
vKRW, vRED, vL4, vPW = 184, 185, 186, 187
vQA = [192, 208]
vDUM = [254, 255]
vACC = [16, 32]
vWF = 112
RING = list(range(192, 256, 4)) + list(range(48, 112, 4))
lQX = [6, 7, 8, 9]
lQW = [10, 11, 12, 13]
lWO = [16, 17, 18, 19]
lPO = 20

LDS_BYTES = 160 * 1024
SLOT = 24576
RED = 6 * SLOT
OBUF = 1 << 20
STAMP = 8 << 20


def srd(a, d, p, size):
    a(f"s_mov_b32 s{d}, s{p}")
    a(f"s_mov_b32 s{d+1}, s{p+1}")
    a(f"s_mov_b32 s{d+2}, {size}")
    a(f"s_mov_b32 s{d+3}, 0x20000")


def D(d):
    return f"s[{d}:{d+3}]"


class VM:
    def __init__(self, a):
        self.a, self.q = a, []

    def add(self, name):
        self.q.append(name)

    def wait(self, name, extra=""):
        idx = [k for k, n in enumerate(self.q) if n == name]
        if not idx:
            if extra:
                self.a("s_waitcnt" + extra)
            return
        n = len(self.q) - 1 - idx[-1]
        self.a(f"s_waitcnt vmcnt({min(n, 63)}){extra}")
        del self.q[: len(self.q) - min(n, 63)]

    def drain(self):
        self.a("s_waitcnt vmcnt(0)")
        self.q.clear()


def inst_sizes(lines):
    import subprocess, tempfile, re
    with tempfile.TemporaryDirectory() as d:
        body = [l for l in lines if not l.startswith(".p2align")]
        open(d + "/t.s", "w").write('.amdgcn_target "amdgcn-amd-amdhsa--gfx950"\n.text\n' + NAME + ":\n" + "\n".join(body) + "\n")
        subprocess.run(["clang", "-x", "assembler", "-target", "amdgcn-amd-amdhsa", "-mcpu=gfx950", "-c", d + "/t.s", "-o", d + "/t.o"], check=True)
        dis = subprocess.run(["llvm-objdump", "-d", "--mcpu=gfx950", d + "/t.o"], capture_output=True, text=True, check=True).stdout
    sz = [4 * len(m.group(1).split()) for m in re.finditer(r"// [0-9A-F]+: ((?:[0-9A-F]{8} ?)+)", dis)]
    out, k = [], 0
    for l in lines:
        t = l.split(";")[0].strip()
        if t.endswith(":") or t.startswith("."):
            out.append(0)
        else:
            out.append(sz[k]); k += 1
    assert k == len(sz)
    return out


def plant_stubs(a):
    NS = 12
    d = a.lines.index("@DISPATCH")
    a.lines[d:d + 1] = [x for k in range(NS) for x in (f"s_cmp_eq_u32 s{sT4}, {k}", "s_cbranch_scc1 L_pgret")]
    sz = inst_sizes(a.lines)
    c0, c1 = a.lines.index("L_compute:"), a.lines.index("L_rare:")
    off, new, n = 0, [], 0
    for i in range(c0, c1):
        if sz[i] and off >= 4096 * (n + 1):
            new += [f"L_pg{n}:", "s_cbranch_execz L_pgret"]
            off += 4
            n += 1
        new.append(a.lines[i])
        off += sz[i]
    assert n <= NS and d > c0
    a.lines[c0:c1] = new
    for k in range(NS):
        a.lines[d + 2 * k + 1] = f"s_cbranch_scc1 L_pg{k}" if k < n else "s_nop 0"


def gen(**kw):
    P = dict(DEFAULTS)
    P.update(kw)
    a = Asm()
    nst = [0]

    def stamp():
        if P["diag"]:
            i = nst[0]
            nst[0] += 1
            a(f"s_memrealtime s[{sTM}:{sTM+1}]")
            a(f"s_memtime s[{sTM+2}:{sTM+3}]")
            a("s_waitcnt lgkmcnt(0)")
            a(f"s_sub_u32 s{sTM+2}, s{sTM+2}, s{sTM+4}")
            a(f"v_writelane_b32 v{vSTAMP}, s{sTM}, {i}")
            a(f"v_writelane_b32 v{vSTAMP}, s{sTM+2}, {16+i}")

    def stamp_out(wave_reg):
        a(f"v_writelane_b32 v{vSTAMP}, s{sSPIN}, 15")
        a(f"s_mul_i32 s{sT0}, s2, 5")
        a(f"s_add_u32 s{sT0}, s{sT0}, {wave_reg}")
        a(f"s_lshl_b32 s{sT0}, s{sT0}, 8")
        a(f"s_add_u32 s{sT0}, s{sT0}, {STAMP}")
        a(f"v_lshlrev_b32 v2, 2, v{vLANE}")
        a(f"buffer_store_dword v{vSTAMP}, v2, {D(D_WS)}, s{sT0} offen")

    a("s_cmp_ge_u32 s2, 256")
    a("s_cbranch_scc1 L_end")
    a("s_load_dwordx16 s[4:19], s[0:1], 0")
    if P["diag"]:
        a(f"s_memrealtime s[{sTM}:{sTM+1}]")
        a(f"s_memtime s[{sTM+4}:{sTM+5}]")
        a(f"v_mov_b32 v{vSTAMP}, 0")
    a("v_lshrrev_b32 v2, 6, v0")
    a(f"s_and_b32 s{sXCD}, s2, 7")
    a(f"v_readfirstlane_b32 s{sW}, v2")
    a(f"s_lshr_b32 s{sIDX}, s2, 3")
    a(f"s_getpc_b64 s[{sPC}:{sPC+1}]")
    a.label("L_pc")
    a(f"v_and_b32 v{vLANE}, 63, v0")
    a(f"s_mov_b64 exec, 7")
    a(f"v_mad_u32_u24 v3, v2, 3, v{vLANE}")
    a(f"v_lshl_add_u32 v3, v3, 5, s{sIDX}")
    a(f"v_lshlrev_b32 v3, 7, v3")
    a(f"v_min_u32 v3, L_end-L_pc, v3")
    a(f"global_load_dword v{vDUM[0]}, v3, s[{sPC}:{sPC+1}]")
    a(f"s_mov_b64 exec, -1")
    a(f"v_lshlrev_b32 v{vL16}, 4, v{vLANE}")
    if P["mode"] == "A":
        a(f"s_lshr_b32 s{sT0}, s{sIDX}, 4")
        a(f"s_lshl_b32 s{sRB}, s{sXCD}, 1")
        a(f"s_add_u32 s{sRB}, s{sRB}, s{sT0}")
        a(f"s_and_b32 s{sHP}, s{sIDX}, 15")
    else:
        a(f"s_lshr_b32 s{sT0}, s{sIDX}, 3")
        a(f"s_lshr_b32 s{sRB}, s{sXCD}, 1")
        a(f"s_lshl_b32 s{sRB}, s{sRB}, 2")
        a(f"s_add_u32 s{sRB}, s{sRB}, s{sT0}")
        a(f"s_and_b32 s{sHP}, s{sXCD}, 1")
        a(f"s_lshl_b32 s{sHP}, s{sHP}, 3")
        a(f"s_and_b32 s{sT0}, s{sIDX}, 7")
        a(f"s_add_u32 s{sHP}, s{sHP}, s{sT0}")
    a(f"s_lshr_b32 s{sT0}, s{sHP}, 1")
    a(f"s_lshl_b32 s{sKEY16}, s{sRB}, 3")
    a(f"s_add_u32 s{sKEY16}, s{sKEY16}, s{sT0}")
    a(f"s_and_b32 s{sMAT}, s{sHP}, 1")
    a(f"s_mov_b32 s{sSPIN}, 0")
    a(f"s_cmp_lg_u32 s{sW}, 0")
    a("s_cbranch_scc1 L_compute")

    vm = VM(a)
    nst[0] = 1
    a(f"v_lshrrev_b32 v2, 3, v{vLANE}")
    a(f"v_lshrrev_b32 v3, 4, v{vLANE}")
    a(f"v_and_b32 v4, 7, v{vLANE}")
    a(f"v_xor_b32 v5, v4, v3")
    a(f"v_lshlrev_b32 v2, 11, v2")
    a(f"v_lshl_add_u32 v{lQX[0]}, v5, 4, v2")
    a(f"v_xor_b32 v{lQX[1]}, 64, v{lQX[0]}")
    a(f"v_add_u32 v{lQX[1]}, {8*2048-1024}, v{lQX[1]}")
    a(f"s_lshl_b32 s{sT2}, s{sKEY16}, 15")
    a(f"s_lshl_b32 s{sT3}, s{sMAT}, 8")
    a(f"s_add_u32 s{sT2}, s{sT2}, s{sT3}")
    a(f"s_lshl_b32 s{sT3}, s{sMAT}, 13")
    a(f"s_mov_b32 s{D_X+2}, {2048*2048}")
    a(f"s_mov_b32 s{D_X+3}, 0x20000")
    a(f"s_mov_b32 s{D_WKV+2}, 65536")
    a(f"s_mov_b32 s{D_WKV+3}, 0x20000")
    a("s_waitcnt lgkmcnt(0)")
    if P["diag"]:
        a(f"v_writelane_b32 v{vSTAMP}, s{sTM}, 0")
    a(f"s_mov_b32 s{D_X}, s{S_X}")
    a(f"s_mov_b32 s{D_X+1}, s{S_X+1}")
    a(f"s_cmp_eq_u32 s{sMAT}, 0")
    a(f"s_cselect_b32 s{D_WKV}, s{S_WK}, s{S_WV}")
    a(f"s_cselect_b32 s{D_WKV+1}, s{S_WK+1}, s{S_WV+1}")

    def kvhalf(hf):
        for w in range(4):
            base = (2 + 2 * hf) * SLOT + w * 12288
            for q in range(2):
                a(f"s_mov_b32 m0, {base + q*2048}")
                a(f"s_add_u32 s{sSO}, s{sT2}, {w*512 + q*128}")
                for j in range(2):
                    a(f"buffer_load_dwordx4 v{lQX[j]}, {D(D_X)}, s{sSO} offen offset:{j*1024} lds")
                    vm.add(f"h{hf}")
                if P["xfirst"] and hf == 0:
                    continue
                a(f"s_mov_b32 m0, {base + 4096 + q*4096}")
                a(f"s_add_u32 s{sSO}, s{sT3}, {w*16384 + q*4096}")
                for j in range(4):
                    a(f"buffer_load_dwordx4 v{vL16}, {D(D_WKV)}, s{sSO} offen offset:{j*1024} lds")
                    vm.add(f"h{hf}")
        if P["xfirst"] and hf == 0:
            for w in range(4):
                base = (2 + 2 * hf) * SLOT + w * 12288
                for q in range(2):
                    a(f"s_mov_b32 m0, {base + 4096 + q*4096}")
                    a(f"s_add_u32 s{sSO}, s{sT3}, {w*16384 + q*4096}")
                    for j in range(4):
                        a(f"buffer_load_dwordx4 v{vL16}, {D(D_WKV)}, s{sSO} offen offset:{j*1024} lds")
                        vm.add(f"h{hf}")

    def wq_setup():
        srd(a, D_WQ, S_WQ, 1024 * 2048)
        a(f"v_and_b32 v5, 1, v3")
        a(f"v_lshlrev_b32 v14, 2, v5")
        a(f"v_xor_b32 v14, v4, v14")
        a(f"v_lshl_add_u32 v{lQW[0]}, v14, 4, v2")
        for j in range(1, 4):
            a(f"v_add_u32 v{lQW[j]}, {j*(8*2048-1024)}, v{lQW[0]}")
        a(f"s_lshr_b32 s{sT0}, s{sRB}, 1")
        a(f"s_mul_i32 s{sROT}, s{sT0}, {P['rot_x']}")
        if P["rot_y"]:
            a(f"s_lshr_b32 s{sT0}, s{sRB}, 2")
            a(f"s_mul_i32 s{sT0}, s{sT0}, {P['rot_y']}")
            a(f"s_add_u32 s{sROT}, s{sROT}, s{sT0}")
        a(f"s_and_b32 s{sT0}, s{sRB}, 1")
        a(f"s_mul_i32 s{sT0}, s{sT0}, {P['rot_j']}")
        a(f"s_add_u32 s{sROT}, s{sROT}, s{sT0}")
        a(f"s_mul_i32 s{sT0}, s{sHP}, {P['rot_h']}")
        a(f"s_add_u32 s{sROT}, s{sROT}, s{sT0}")
        a(f"s_lshl_b32 s{sXB}, s{sRB}, 18")
        a(f"s_lshl_b32 s{sWB}, s{sHP}, 7")

    def slice_ks(ks):
        a(f"s_add_u32 s{sT0}, s{sROT}, {ks}")
        a(f"s_and_b32 s{sT0}, s{sT0}, 15")

    def slice_w(ks):
        slot = (ks % 6) * SLOT
        a(f"s_lshl_b32 s{sSO}, s{sT0}, 17")
        a(f"s_add_u32 s{sSO}, s{sSO}, s{sWB}")
        for g in range(2):
            a(f"s_mov_b32 m0, {slot + 16384 + g*4096}")
            if g:
                a(f"s_add_u32 s{sSO}, s{sSO}, {32*2048}")
            else:
                a("s_nop 0")
            for j in range(4):
                a(f"buffer_load_dwordx4 v{lQW[j]}, {D(D_WQ)}, s{sSO} offen offset:{j*1024} lds")
                vm.add(f"q{ks}")

    def slice_x(ks):
        slot = (ks % 6) * SLOT
        a(f"s_lshl_b32 s{sSO}, s{sT0}, 7")
        for w in range(4):
            a(f"s_mov_b32 m0, {slot + w*4096}")
            a(f"s_add_u32 s{sSO}, s{sSO}, " + (f"s{sXB}" if w == 0 else "65536"))
            for j in range(4):
                a(f"buffer_load_dwordx4 v{lQX[j]}, {D(D_X)}, s{sSO} offen offset:{j*1024} lds")
                vm.add(f"q{ks}")

    def qslice(ks):
        slice_ks(ks)
        slice_w(ks)
        slice_x(ks)

    def room(n):
        if len(vm.q) + n > 63:
            k = 63 - n
            a(f"s_waitcnt vmcnt({k})")
            del vm.q[: len(vm.q) - k]

    mark = len(a.lines)
    kvhalf(0)
    body = a.lines[mark:]
    del a.lines[mark:]
    vm.q = ["pf"]
    cnt = 0
    for ln in body:
        a(ln)
        if ln.startswith("buffer_load"):
            vm.add("h0"); cnt += 1
            if cnt == P["wq0at"]:
                wq_setup()
                slice_ks(0)
                slice_w(0)
    a(f"s_xor_b32 s{sT2}, s{sT2}, 256")
    a(f"s_xor_b32 s{sT3}, s{sT3}, 8192")
    if P["lstamp"]:
        stamp()
    a(f"v_add_u32 v{lQX[2]}, {16*2048-2048}, v{lQX[0]}")
    a(f"v_add_u32 v{lQX[3]}, {16*2048-2048}, v{lQX[1]}")
    mark = len(a.lines)
    q_before = list(vm.q)
    kvhalf(1)
    body = a.lines[mark:]
    del a.lines[mark:]
    vm.q = q_before
    cnt = 0
    for ln in body:
        if ln.startswith("buffer_load"):
            if cnt == 6:
                room(18)
            a(ln); vm.add("h1"); cnt += 1
            if cnt == 24:
                vm.wait("h0")
                stamp()
                a("s_barrier")
        else:
            a(ln)
    room(16)
    slice_x(0)
    slice_ks(1)
    room(8)
    slice_w(1)
    vm.wait("h1")
    if P["lstamp"]:
        stamp()
    a("s_barrier")
    slice_x(1)
    srd(a, D_WS, S_WS, 16 << 20)
    srd(a, D_WO, S_WO, 1024 * 2048)
    srd(a, D_DBG, S_DBG, 256)
    a(f"v_lshlrev_b32 v14, 1, v5")
    a(f"v_xor_b32 v14, v4, v14")
    a(f"v_lshl_add_u32 v{lWO[0]}, v14, 4, v2")
    for j in range(1, 4):
        a(f"v_add_u32 v{lWO[j]}, {j*(8*2048-1024)}, v{lWO[0]}")
    for i in range(4):
        a(f"v_mov_b32 v{lPO+i}, -1")
    room(24)
    qslice(2)
    a("s_barrier")
    stamp()

    def kvunit(u, lo=0, hi=8):
        slot = ((3 + u) % 5) * 32768
        for t in range(lo, hi):
            a(f"s_mov_b32 m0, {slot + t*4096}")
            a(f"s_mov_b32 s{sSO}, {u*32768 + t*4096}")
            for j in range(4):
                a(f"buffer_load_dwordx4 v{vL16}, {D(D_WS)}, s{sSO} offen offset:{j*1024} sc1 lds")
                vm.add(f"u{u}")

    def wounit(i):
        for g in range(4 * i, 4 * i + 4):
            a(f"s_add_u32 s{sG}, s{sHP}, {g}")
            a(f"s_and_b32 s{sG}, s{sG}, 15")
            a(f"s_lshl_b32 s{sG}, s{sG}, 17")
            a(f"s_add_u32 s{sG}, s{sG}, s{sWB}")
            for hf in range(2):
                a(f"s_mov_b32 m0, {32768 + g*8192 + hf*4096}")
                if hf:
                    a(f"s_add_u32 s{sG}, s{sG}, {32*2048}")
                else:
                    a("s_nop 0")
                for j in range(4):
                    a(f"buffer_load_dwordx4 v{lWO[j]}, {D(D_WO)}, s{sG} offen offset:{j*1024} lds")
                    vm.add(f"wo{i}")

    def poison():
        a(f"s_lshl_b32 s{sOOWN}, s{sHP}, 12")
        a(f"s_add_u32 s{sOOWN}, s{sOOWN}, s{sXB}")
        a(f"s_add_u32 s{sOOWN}, s{sOOWN}, {OBUF}")
        room(16)
        for w in range(4):
            for j in range(4):
                a(f"buffer_store_dwordx4 {R(lPO,4)}, v{vL16}, {D(D_WS)}, s{sOOWN} offen offset:{j*1024} sc1")
                vm.add("po")
            if w < 3:
                a(f"s_add_u32 s{sOOWN}, s{sOOWN}, 65536")

    nxt = 3
    for it in range(16):
        want = it + P["lead0"] - sum(1 for s_ in P["skip"] if s_ <= it)
        while nxt <= min(want, 15):
            assert nxt <= it + 4 or nxt <= 5
            if nxt == 15:
                assert it > P["kv_it"]
                room(4 * P["ntile0"])
                kvunit(0, 0, P["ntile0"])
            room(24)
            qslice(nxt)
            nxt += 1
        if it == 15:
            kvunit(0, P["ntile0"], 8)
        vm.wait(f"q{it}")
        if P["lstamp"] and it in (0, 4, 8, 12, 15):
            stamp()
        a("s_barrier")
    assert nxt == 16
    if P["po_at"] == 0:
        poison()
    vm.wait("u0")
    a("s_barrier")
    kvunit(1)
    stamp()
    a(f"s_lshl_b32 s{sT0}, s{sRB}, 2")
    a(f"v_lshl_add_u32 v14, v{vLANE}, 8, s{sT0}")
    a(f"v_mov_b32 v5, 0x10000")
    for p in range(8):
        if p == 0:
            room(32)
            kvunit(2)
        elif p == 1:
            if P["po_at"] == 1:
                poison()
            room(32)
            kvunit(3)
        elif p == 2:
            vm.wait("po")
            a(f"buffer_atomic_add v5, v14, {D(D_DBG)}, 0 offen sc1")
            vm.add("at")
            room(32)
            kvunit(4)
            room(32)
            kvunit(5)
        elif p == 3:
            room(32)
            kvunit(6)
            room(32)
            kvunit(7)
        else:
            room(32)
            wounit(p - 4)
        if p == 6:
            a.label("L_poll2")
            a(f"buffer_load_dword v5, v14, {D(D_DBG)}, 0 offen sc1")
            a(f"s_add_u32 s{sSPIN}, s{sSPIN}, 1")
            a("s_waitcnt vmcnt(0)")
            a(f"v_readfirstlane_b32 s{sT0}, v5")
            a(f"s_cmp_gt_u32 s{sSPIN}, 0x400000")
            a("s_cbranch_scc1 L_poll2x")
            a(f"s_cmp_lt_u32 s{sT0}, 0x100000")
            a("s_cbranch_scc1 L_poll2")
            a.label("L_poll2x")
        if p < 4:
            vm.wait(f"u{p+1}")
        elif p == 4:
            vm.wait("u7")
        elif p == 5:
            vm.wait("wo0")
        else:
            vm.drain()
        a("s_barrier")
    if P["diag"]:
        stamp()
        stamp_out("0")
    a("s_endpgm")

    a(".p2align 12")
    a.label("L_compute")
    vm = VM(a)
    nst[0] = 1
    a(f"s_sub_u32 s{sW}, s{sW}, 1")
    vm.add("pf")
    a(f"s_lshl_b32 s{sT0}, s{sIDX}, 2")
    a(f"s_add_u32 s{sT0}, s{sT0}, s{sW}")
    a("s_mov_b64 exec, 0xff")
    a(f"s_and_b32 s{sT0}, s{sT0}, 63")
    a(f"s_lshl_b32 s{sT0}, s{sT0}, 10")
    a(f"v_lshl_add_u32 v3, v{vLANE}, 7, s{sT0}")
    a(f"s_cmp_lt_u32 s{sIDX}, 16")
    a("s_waitcnt lgkmcnt(0)")
    if P["touch"]:
        a(f"s_cselect_b32 s{sT2}, s{S_WK}, s{S_WV}")
        a(f"s_cselect_b32 s{sT3}, s{S_WK+1}, s{S_WV+1}")
        a(f"global_load_dword v{vDUM[1]}, v3, s[{sT2}:{sT3}]")
        vm.add("pf")
    a("s_mov_b64 exec, -1")
    if P["diag"]:
        a(f"v_writelane_b32 v{vSTAMP}, s{sTM}, 0")
    srd(a, D_WS, S_WS, 16 << 20)
    srd(a, D_DBG, S_DBG, 256)
    srd(a, D_OUT, S_OUT, 2048 * 2048)
    a(f"s_lshl_b32 s{sXB}, s{sRB}, 2")
    a(f"s_add_u32 s{sXB}, s{sXB}, s{sW}")
    a(f"s_lshl_b32 s{sXB}, s{sXB}, 16")
    a(f"s_lshl_b32 s{sT0}, s{sHP}, 7")
    a(f"s_add_u32 s{sOUTB}, s{sXB}, s{sT0}")
    a(f"s_add_u32 s{sOROW}, s{sXB}, {OBUF}")
    for g in range(16):
        a(f"s_add_u32 s{sT0}, s{sHP}, {g}")
        a(f"s_and_b32 s{sT0}, s{sT0}, 15")
        a(f"s_lshl_b32 s{sT0}, s{sT0}, 12")
        a(f"s_add_u32 s{sOG+g}, s{sT0}, s{sOROW}")
    a(f"s_mul_i32 s{sT1}, s{sW}, 12288")
    a(f"s_add_u32 s{sT1}, s{sT1}, {2*SLOT}")
    a(f"v_lshrrev_b32 v3, 4, v{vLANE}")
    a(f"v_and_b32 v2, 15, v{vLANE}")
    a(f"v_lshrrev_b32 v4, 1, v2")
    a(f"v_xor_b32 v4, v4, v3")
    a(f"v_lshlrev_b32 v4, 4, v4")
    a(f"v_lshl_add_u32 v4, v2, 7, v4")
    a(f"v_add_u32 v{vKRX[0]}, s{sT1}, v4")
    a(f"v_xor_b32 v{vKRX[1]}, 64, v{vKRX[0]}")
    a(f"v_lshrrev_b32 v4, 2, v2")
    a(f"v_lshl_add_u32 v5, v3, 3, v4")
    a(f"v_lshlrev_b32 v5, 6, v5")
    a(f"v_and_b32 v2, 3, v{vLANE}")
    a(f"v_lshl_add_u32 v5, v2, 3, v5")
    a(f"s_add_u32 s{sT0}, s{sT1}, 4096")
    a(f"v_add_u32 v{vKRW}, s{sT0}, v5")
    a(f"v_lshrrev_b32 v16, 5, v{vLANE}")
    a(f"v_lshl_add_u32 v5, v16, 3, v4")
    a(f"v_lshlrev_b32 v5, 7, v5")
    a(f"v_lshl_add_u32 v5, v2, 3, v5")
    a(f"v_and_b32 v17, 1, v3")
    a(f"v_lshl_add_u32 v5, v17, 5, v5")
    a(f"v_lshrrev_b32 v18, 1, v4")
    a(f"v_lshl_add_u32 v5, v18, 6, v5")
    a(f"v_add_u32 v{vRW[0]}, 16384, v5")
    a(f"v_xor_b32 v{vRW[1]}, 64, v{vRW[0]}")
    a(f"v_lshl_add_u32 v5, v16, 2, v4")
    a(f"v_lshlrev_b32 v5, 7, v5")
    a(f"v_and_b32 v19, 1, v2")
    a(f"v_lshl_add_u32 v5, v19, 6, v5")
    a(f"v_lshl_add_u32 v5, v18, 5, v5")
    a(f"v_lshl_add_u32 v5, v17, 4, v5")
    a(f"v_lshrrev_b32 v20, 1, v2")
    a(f"v_lshl_add_u32 v5, v20, 3, v5")
    a(f"v_add_u32 v{vWR[0]}, 32768, v5")
    a(f"v_xor_b32 v{vWR[1]}, 32, v{vWR[0]}")
    a(f"v_add_u32 v{vWR[2]}, 65536, v{vWR[0]}")
    a(f"v_add_u32 v{vWR[3]}, 65536, v{vWR[1]}")
    a(f"s_lshl_b32 s{sT4}, s{sW}, 12")
    a(f"v_and_b32 v5, 31, v{vLANE}")
    a(f"v_bfe_u32 v21, v5, 1, 3")
    a(f"v_xor_b32 v21, v21, v16")
    a(f"v_lshlrev_b32 v21, 4, v21")
    a(f"v_lshl_add_u32 v21, v5, 7, v21")
    a(f"v_add_u32 v{vRX[0]}, s{sT4}, v21")
    for t in range(1, 4):
        a(f"v_xor_b32 v{vRX[t]}, {32*t}, v{vRX[0]}")
    a(f"v_and_b32 v21, 7, v{vLANE}")
    a(f"v_lshlrev_b32 v22, 2, v16")
    a(f"v_xor_b32 v22, v22, v21")
    a(f"v_lshlrev_b32 v22, 4, v22")
    a(f"v_lshl_add_u32 v22, v5, 7, v22")
    a(f"v_add_u32 v{vTW}, s{sT4}, v22")
    a(f"v_lshrrev_b32 v22, 3, v{vLANE}")
    a(f"v_xor_b32 v23, v22, v21")
    a(f"v_lshlrev_b32 v23, 4, v23")
    a(f"v_lshl_add_u32 v23, v22, 7, v23")
    a(f"v_add_u32 v{vTR}, s{sT4}, v23")
    a(f"v_lshlrev_b32 v22, 11, v22")
    a(f"v_lshl_add_u32 v{vOUT}, v21, 4, v22")
    a(f"s_lshr_b32 s{sT0}, s{sW}, 1")
    a(f"s_and_b32 s{sT2}, s{sW}, 1")
    a(f"s_lshr_b32 s{sCNT}, s{sKEY16}, 1")
    a(f"s_lshl_b32 s{sKVST}, s{sCNT}, 12")
    a(f"s_and_b32 s{sT3}, s{sKEY16}, 1")
    a(f"s_cmp_eq_u32 s{sMAT}, 0")
    a(f"s_cselect_b32 s{sSO}, s{sT0}, s{sT2}")
    a(f"s_cselect_b32 s{sG}, s{sT2}, s{sT0}")
    a(f"s_cselect_b32 s{sT0}, 8, 9")
    a(f"s_cselect_b32 s{sT2}, 9, 8")
    a(f"s_cselect_b32 s{sT4}, 8, 10")
    a(f"s_cselect_b32 s{sWB}, 0, 2048")
    a(f"s_cselect_b32 s{sSC}, {hex(f2u(math.log2(math.e) / math.sqrt(32.0)))}, 1.0")
    a(f"s_lshl_b32 s{sSO}, s{sSO}, 10")
    a(f"s_lshl_b32 s{sG}, s{sG}, s{sT0}")
    a(f"s_add_u32 s{sSO}, s{sSO}, s{sG}")
    a(f"s_add_u32 s{sSO}, s{sSO}, {RED}")
    a(f"v_lshrrev_b32 v4, 2, v{vLANE}")
    a(f"v_lshlrev_b32 v4, 4, v4")
    a(f"v_lshl_add_u32 v4, v19, 3, v4")
    a(f"v_lshlrev_b32 v5, s{sT2}, v20")
    a(f"v_add3_u32 v{vRED}, v4, v5, s{sSO}")
    a(f"s_lshl_b32 s{sT0}, s{sW}, s{sT2}")
    a(f"s_lshl_b32 s{sT3}, s{sT3}, s{sT4}")
    a(f"s_add_u32 s{sKVST}, s{sKVST}, s{sWB}")
    a(f"s_add_u32 s{sKVST}, s{sKVST}, s{sT0}")
    a(f"s_add_u32 s{sKVST}, s{sKVST}, s{sT3}")
    a(f"v_lshlrev_b32 v{vL4}, 2, v{vLANE}")
    a(f"s_lshl_b32 s{sCNT}, s{sCNT}, 2")
    a(f"s_lshl_b32 s{sT2}, s{sW}, 11")
    a(f"s_add_u32 s{sT2}, s{sT2}, {RED}")
    a(f"v_add_u32 v{vPW}, s{sT2}, v{vL16}")
    a(f"v_mov_b32 v{vIDX}, 0xdddddddd")
    a(f"v_mov_b32 v{vAB[0]}, v{vL16}")
    a(f"v_add_u32 v{vAB[1]}, 65536, v{vL16}")
    a(f"v_add_u32 v{vAB[2]}, 131072, v{vL16}")
    a(f"v_bfe_u32 v4, v{vLANE}, 2, 1")
    a(f"v_mov_b32 v5, 0x3f803f80")
    if P["lrows"] == 2:
        a(f"v_and_b32 v2, 11, v{vLANE}")
    if P["lrows"] <= 4:
        a(f"v_cmp_eq_u32 vcc, 0, v2")
        a("s_nop 1")
        a(f"v_cndmask_b32 v5, 0, v5, vcc")
    a(f"v_mul_lo_u32 v{vONES+2}, v4, v5")
    a(f"v_mov_b32 v{vONES+3}, v{vONES+2}")
    a(f"v_sub_u32 v{vONES}, v5, v{vONES+2}")
    a(f"v_mov_b32 v{vONES+1}, v{vONES}")
    for i in range(vO[0], vL[1] + 4):
        a(f"v_mov_b32 v{i}, 0")
    if P["stubs"]:
        a("s_waitcnt vmcnt(0)")
        a(f"s_sub_u32 s{sT4}, s{sW}, 4")
        a("s_mov_b64 exec, 0")
        a.label("L_pgret")
        a(f"s_add_u32 s{sT4}, s{sT4}, 4")
        a("@DISPATCH")
        a("s_mov_b64 exec, -1")
    XF, WF, KA = 16, 48, 112

    def kv_reads(t):
        hb = (t >> 2) * 2 * SLOT
        a(f"ds_read_b128 {R(XF+4*t,4)}, v{vKRX[t&1]} offset:{hb + ((t>>1)&1)*2048}")
        for dt in range(2):
            for u in range(2):
                a(f"ds_read_b64_tr_b16 {R(WF+8*t+4*dt+2*u,2)}, v{vKRW} offset:{hb + (t&3)*2048+u*256+dt*32}")

    def kv_mfma(t, mat):
        for dt in range(2):
            w, x = R(WF + 8 * t + 4 * dt, 4), R(XF + 4 * t, 4)
            A, B = (w, x) if mat == 0 else (x, w)
            c = "0" if t == 0 else R(KA + 4 * dt, 4)
            a(f"v_mfma_f32_16x16x32_bf16 {R(KA+4*dt,4)}, {A}, {B}, {c}")

    a(f"s_cmp_eq_u32 s{sMAT}, 0")
    a("s_cbranch_scc0 L_vmat")
    for mat in range(2):
        if mat:
            a.label("L_vmat")
        for half in range(2):
            a("s_barrier")
            t0 = 4 * half
            kv_reads(t0); kv_reads(t0 + 1); kv_reads(t0 + 2)
            a("s_waitcnt lgkmcnt(10)")
            kv_mfma(t0, mat)
            kv_reads(t0 + 3)
            a("s_waitcnt lgkmcnt(10)")
            kv_mfma(t0 + 1, mat)
            a("s_waitcnt lgkmcnt(5)")
            kv_mfma(t0 + 2, mat)
            a("s_waitcnt lgkmcnt(0)")
            kv_mfma(t0 + 3, mat)
        if mat == 0:
            a("s_branch L_kvdone")
    a.label("L_kvdone")
    a("s_nop 6")
    a(f"ds_write_b128 v{vPW}, {R(KA,4)}")
    a(f"ds_write_b128 v{vPW}, {R(KA+4,4)} offset:1024")
    a("s_waitcnt lgkmcnt(0)")
    a("s_barrier")
    for p in range(4):
        a(f"ds_read_b64 {R(112+2*p,2)}, v{vRED} offset:{p*2048}")
    a("s_waitcnt lgkmcnt(2)")
    a("v_add_f32 v112, v112, v114")
    a("v_add_f32 v113, v113, v115")
    a("s_waitcnt lgkmcnt(0)")
    a("v_add_f32 v116, v116, v118")
    a("v_add_f32 v117, v117, v119")
    a("v_add_f32 v112, v112, v116")
    a("v_add_f32 v113, v113, v117")
    a(f"v_mul_f32 v112, s{sSC}, v112")
    a(f"v_mul_f32 v113, s{sSC}, v113")
    a("v_cvt_pk_bf16_f32 v4, v112, v113")
    a(f"buffer_store_dword v4, v{vL4}, {D(D_WS)}, s{sKVST} offen sc1")
    stamp()
    QB = [16, 64]

    def q_read_list(ks):
        b = QB[ks & 1]
        off = (ks % 2) * SLOT
        L = []
        for t in range(4):
            L.append(f"ds_read_b128 {R(b+4*t,4)}, v{vRX[t]} offset:{off}")
            for hd in range(2):
                for u in range(2):
                    L.append(f"ds_read_b64_tr_b16 {R(b+16+8*t+4*hd+2*u,2)}, v{vRW[hd]} offset:{off+t*2048+u*512}")
        return L

    def q_mfma_list(ks):
        b = QB[ks & 1]
        L = []
        for t in range(4):
            for hd in range(2):
                c = "0" if (ks == 0 and t == 0) else R(vQA[hd], 16)
                L.append(f"v_mfma_f32_32x32x16_bf16 {R(vQA[hd],16)}, {R(b+16+8*t+4*hd,4)}, {R(b+4*t,4)}, {c}")
        return L

    for it in range(16):
        if it == P["kv_it"]:
            a(f"s_cmp_lg_u32 s{sW}, 0")
            a("s_cbranch_scc1 L_spun")
            a("s_waitcnt vmcnt(0)")
            a(f"v_and_b32 v{vPOLL}, 0xffff, v{vPOLL}")
            a(f"v_cmp_gt_u32 vcc, 4, v{vPOLL}")
            a("s_cbranch_vccnz L_spin")
            a.label("L_spun")
        a("s_waitcnt vmcnt(0) lgkmcnt(0)" if it == P["flag_it"] else "s_waitcnt lgkmcnt(0)")
        a("s_barrier")
        if P["qstamp"] and it in (0, 4, 8, 12):
            stamp()
        reads = q_read_list(it)
        LAG = P["qlag"]
        old = q_mfma_list(it - 1)[8 - LAG:] if it >= 1 else []
        new = q_mfma_list(it)[: 8 - LAG]
        last = it == 15
        ri = 0
        nfirst = 15 if LAG >= 4 else 10
        for m in range(max(len(old), 1)):
            if old:
                a(old[m])
            rt = (nfirst * (m + 1) + len(old) - 1) // len(old) if old else nfirst
            while ri < rt:
                a(reads[ri]); ri += 1
        for m in range(len(new)):
            if m % 2 == 0:
                a(f"s_waitcnt lgkmcnt({ri - 5 * (m // 2 + 1)})")
            a(new[m])
            for _ in range(3):
                if ri < 20:
                    a(reads[ri]); ri += 1
        assert ri == 20
        if it % 2 == 1 and not last:
            d = 2 * SLOT if it % 6 != 5 else -4 * SLOT
            for v in vRX + vRW:
                a(f"v_add_u32 v{v}, {d}, v{v}")
        if it in (P["flag_it"], P["poll_it"]):
            a(f"s_cmp_lg_u32 s{sW}, 0")
            a(f"s_cbranch_scc1 L_nf{it}")
            if it == P["flag_it"]:
                a("s_mov_b64 exec, 1")
                a(f"v_mov_b32 v2, s{sCNT}")
                a("v_mov_b32 v3, 1")
                a(f"buffer_atomic_add v3, v2, {D(D_DBG)}, 0 offen sc1")
                a("s_mov_b64 exec, -1")
            else:
                a(f"buffer_load_dword v{vPOLL}, v{vL4}, {D(D_DBG)}, 0 offen sc1")
            a.label(f"L_nf{it}")
    mf = q_mfma_list(15)[8 - P["qlag"]:]
    a("s_waitcnt lgkmcnt(0)")
    for m in mf[0::2] + mf[1::2]:
        a(m)
    stamp()

    def kvread(inst, tt, f):
        addr = ((3 + (tt >> 3)) % 5) * 32768 + (tt & 7) * 4096 + f * 1024
        return f"ds_read_b128 {R(vKVB[inst&1]+4*f,4)}, v{vAB[addr>>16]} offset:{addr&0xffff}"

    def qk(q, sb, kb, s, czero=False):
        c = R(sb, 16) if s else ("0" if (czero or P["czero"]) else R(vC[q], 16))
        return f"v_mfma_f32_32x32x16_bf16 {R(sb,16)}, {R(kb+4*s,4)}, {R(vQ[q]+4*s,4)}, {c}"

    def pv(q, sb, kb, s):
        return f"v_smfmac_f32_32x32x32_bf16 {R(vO[q],16)}, {R(kb+8+4*s,4)}, {R(sb+8*s,8)}, v{vIDX}"

    def ls(q, sb, s):
        return f"v_smfmac_f32_16x16x64_bf16 {R(vL[q],4)}, {R(vONES,4)}, {R(sb+8*s,8)}, v{vIDX}"

    def rowmax_tree(s, dst, first):
        if first:
            a(f"v_max3_f32 v{dst}, v{s}, v{s+1}, v{s+2}")
            k = 3
        else:
            k = 0
        while k + 1 < 16:
            a(f"v_max3_f32 v{dst}, v{dst}, v{s+k}, v{s+k+1}")
            k += 2
        if k < 16:
            a(f"v_max_f32 v{dst}, v{dst}, v{s+k}")

    def cfill(q, m, t):
        a(f"v_mov_b32 v{t}, v{m}")
        a("s_nop 1")
        a(f"v_permlane32_swap_b32 v{m}, v{t}")
        a(f"v_min_f32_e64 v{vC[q]}, -v{m}, -v{t}")
        a(f"v_min_f32_e64 v{vC[q]+1}, -v{m}, -v{t}")
        for i in range(2, 16, 2):
            a(f"v_mov_b64 {R(vC[q]+i,2)}, {R(vC[q],2)}")

    for f in range(4):
        a(kvread(0, 0, f))
    a(kvread(1, 1, 0))
    a(f"s_nop {6 - P['qlag'] // 2}")
    for i in range(8):
        a(f"v_cvt_pk_bf16_f32 v{vQ[0]+i}, v{vQA[0]+2*i}, v{vQA[0]+2*i+1}")
    a("s_waitcnt lgkmcnt(3)")
    a("s_nop 0")
    a(qk(0, vS[0], vKVB[0], 0, True))
    a(qk(0, vS[0], vKVB[0], 1))
    for i in range(8):
        a(f"v_cvt_pk_bf16_f32 v{vQ[1]+i}, v{vQA[1]+2*i}, v{vQA[1]+2*i+1}")
    a("s_nop 1")
    a(qk(1, vS[1], vKVB[0], 0, True))
    a(qk(1, vS[1], vKVB[0], 1))
    rowmax_tree(vS[0], 2, True)
    cfill(0, 2, 3)
    a("s_nop 1")
    a(qk(0, vS[0], vKVB[0], 0))
    a(qk(0, vS[0], vKVB[0], 1))
    rowmax_tree(vS[1], 4, True)
    cfill(1, 4, 5)
    stamp()

    def finish_head(q, inter=()):
        inter = list(inter)
        o = vO[q]
        if P["lrows"] == 2:
            a(f"v_mov_b32 v3, v{vL[q]}")
            a("s_nop 1")
            a(f"v_permlane32_swap_b32 v{vL[q]}, v3")
        a(f"v_pk_add_f32 v[2:3], {R(o,2)}, {R(o+2,2)}")
        for i in range(4, 16, 2):
            a(f"v_pk_add_f32 v[2:3], v[2:3], {R(o+i,2)}")
        a(f"v_cmp_nge_f32 vcc, s{sT0}, v{vL[q]}")
        a("v_add_f32 v2, v2, v3")
        a(f"v_cmp_class_f32 s[{sT2}:{sT3}], v2, s{sT1}")
        a(f"s_or_b64 vcc, vcc, s[{sT2}:{sT3}]")
        a("s_nop 0" if P["dense"] else f"s_branch L_truemax{q}" if P["force_fb"] else f"s_cbranch_vccnz L_truemax{q}")
        a.label(f"L_norm{q}")
        a(f"v_rcp_f32 v2, v{vL[q]}")
        if inter:
            inter.pop(0)()
        else:
            a("s_nop 0")
        for s in range(2):
            for i in range(8 * s, 8 * s + 8):
                a(f"v_mul_f32 v{o+i}, v2, v{o+i}")
            if inter:
                inter.pop(0)()
            for i in range(4 * s, 4 * s + 4):
                a(f"v_cvt_pk_bf16_f32 v{vOWN+8*q+i}, v{o+2*i}, v{o+2*i+1}")
            for i in range(4 * s, 4 * s + 4):
                a(f"v_min_u32 v{vOWN+8*q+i}, -2, v{vOWN+8*q+i}")
            if inter:
                inter.pop(0)()
        while inter:
            inter.pop(0)()
        for s in range(2):
            f = 2 * q + s
            a(f"buffer_store_dwordx4 {R(vOWN+4*f,4)}, v{vL16}, {D(D_WS)}, s{sOG} offen offset:{f*1024} sc1")
            vm.add("ost")

    vm.q.clear()
    a(f"s_mov_b32 s{sT0}, {hex(f2u(2.0**60))}")
    a(f"s_movk_i32 s{sT1}, 0x207")
    J = P["J"]
    NP = 128 - 2 * J
    T0 = 64 - J
    steps = [(n & 1, n >> 1, n >> 1) for n in range(NP)]
    steps += [(0, T0 + j, T0 + j) for j in range(J)] + [(1, T0 + j, 64 + j) for j in range(J)]
    tile_of = {i: t for (_, t, i) in steps}
    rd1 = {n: [] for n in range(128)}
    rd0 = {n: [] for n in range(128)}
    for n in range(NP - 2):
        t = n >> 1
        if n & 1 == 0:
            rd1[n] = [(t + 1, 1)]; rd0[n] = [(t + 1, 2)]
        else:
            rd1[n] = [(t + 1, 3)]; rd0[n] = [(t + 2, 0)]
    rd1[NP - 2] = [(T0, 1)]; rd0[NP - 2] = [(T0, 2), (T0, 3)]
    for n in range(NP - 1, 128):
        if n + 2 < 128:
            rd1[n] = [(steps[n + 2][2], 0), (steps[n + 2][2], 1)]
        if n >= NP and n + 1 < 128:
            rd0[n] = [(steps[n + 1][2], 2), (steps[n + 1][2], 3)]
    bars = {16 * u - 3 for u in range(1, 7)} | {2 * P["ntile0"] - 3, 109 if J == 8 else 119}
    assert J in (8, 12, 16)
    order = [(0, f) for f in range(4)] + [(g, f) for g in range(1, 16) for f in (0, 1)] + [(g, f) for g in range(1, 16) for f in (2, 3)]

    def freg(y):
        return vOWN + 4 * y if y < 4 else RING[(y - 4) % len(RING)]

    def oload(y):
        g, f = order[y]
        return f"buffer_load_dwordx4 {R(freg(y),4)}, v{vL16}, {D(D_WS)}, s{sOG+g} offen offset:{f*1024} sc1"

    nx = [4]

    def issue_load():
        a(oload(nx[0]))
        vm.add(f"o{nx[0]}")
        nx[0] += 1

    pre = P["pre"]
    pre_at = {}
    for k in range(pre):
        pre_at.setdefault(127 - (pre - 1 - k) // 2, []).append(k)
    assert pre + P["early"] + P["mid"] <= 16 and pre <= 16
    items = []
    for n in range(128):
        q, t, ins = steps[n]
        sb = vS[n & 1]
        so = vS[(n + 1) & 1]
        ex = [("i", f"v_exp_f32 v{sb+i}, v{sb+i}", None) for i in range(16)]
        if P["astamp"] and n in (2, 14, 30, 46, 62, 94, 112, 120):
            items.append(("call", stamp))
        items += ex[0:2]
        if n > 0:
            pq, _, pi_ = steps[n - 1]
            items.append(("i", pv(pq, so, vKVB[pi_ & 1], 1), (pi_, 3)))
        items.append(("w",))
        items += ex[2:5]
        if n > 0:
            items.append(("i", ls(pq, so, 1), None))
        items += [("r",) + r for r in rd1[n]]
        items += ex[5:7]
        if n < 127:
            nq, _, ni = steps[n + 1]
            items.append(("i", qk(nq, so, vKVB[ni & 1], 0), (ni, 0)))
        items += ex[7:10]
        if n < 127:
            items.append(("i", qk(nq, so, vKVB[ni & 1], 1), (ni, 1)))
        items.append(("w",) if n >= NP - 1 else ("i", "s_nop 0", None))
        items += ex[10:13]
        items.append(("i", pv(q, sb, vKVB[ins & 1], 0), (ins, 2)))
        if n in bars:
            items.append(("bar",))
        elif n in pre_at:
            items += [("call", issue_load)] * len(pre_at[n])
            if len(pre_at[n]) < 2:
                items.append(("i", "s_nop 0", None))
        else:
            items.append(("i", "s_nop 1", None))
        items += ex[13:16]
        items.append(("i", ls(q, sb, 0), None))
        if rd0[n]:
            items += [("r",) + r for r in rd0[n]]
        else:
            items.append(("i", "s_nop 0", None))
        if n == 128 - J:
            items.append(("call", lambda: finish_head(0)))
    items.append(("i", "s_nop 0", None))
    items.append(("i", pv(1, vS[1], vKVB[(63 + J) & 1], 1), (63 + J, 3)))
    items.append(("i", ls(1, vS[1], 1), None))
    if P["dense"]:
        import re
        new = []
        for it_ in items:
            if it_[0] == "i":
                m = re.match(r"v_smfmac_f32_32x32x32_bf16 v\[(\d+):\d+\], v\[(\d+):\d+\], v\[(\d+):", it_[1])
                m2 = re.match(r"v_smfmac_f32_16x16x64_bf16 v\[(\d+):\d+\], v\[(\d+):\d+\], v\[(\d+):", it_[1])
                if m:
                    d, v_, b_ = map(int, m.groups())
                    pb = 224 + (b_ - 16) // 2
                    cv = [("i", f"v_cvt_pk_bf16_f32 v{pb+i}, v{b_+2*i}, v{b_+2*i+1}", None) for i in range(4)]
                    k = len(new)
                    c = 0
                    while c < 2:
                        k -= 1
                        if new[k][0] == "i" and new[k][1].startswith("v_exp"):
                            c += 1
                    new[k:k] = cv
                    new.append(("i", f"v_mfma_f32_32x32x16_bf16 {R(d,16)}, {R(v_,4)}, {R(pb,4)}, {R(d,16)}", it_[2]))
                    continue
                if m2:
                    d, o_, b_ = map(int, m2.groups())
                    if b_ & 8:
                        pb = 224 + (b_ - 8 - 16) // 2
                        new.append(("i", f"v_smfmac_f32_16x16x64_bf16 {R(d,4)}, {R(o_,4)}, {R(pb,8)}, v{vIDX}", None))
                    continue
            new.append(it_)
        for k in range(len(new)):
            if new[k][0] == "r" and new[k-1][0] == "i" and new[k-1][1].startswith("v_exp"):
                j_ = k - 1
                while not (new[j_][0] == "i" and "mfma" in new[j_][1]) and new[j_][0] != "bar":
                    j_ -= 1
                new.insert(j_ + 1, new.pop(k))
        items = new
    issued = [(0, 2), (0, 3), (1, 0)]
    content = {(0, 0): (0, 0), (0, 1): (0, 1)}
    for k, it_ in enumerate(items):
        if it_[0] == "i":
            if it_[2] is not None:
                ins, f = it_[2]
                assert content.get((ins & 1, f)) == (ins, f), (k, it_, content.get((ins & 1, f)))
            a(it_[1])
        elif it_[0] == "r":
            _, ins, f = it_
            content.pop((ins & 1, f), None)
            issued.append((ins, f))
            assert len(issued) <= 15
            a(kvread(ins, tile_of[ins], f))
        elif it_[0] == "call":
            it_[1]()
        else:
            if it_[0] == "bar":
                keep = 0
            else:
                needs = []
                for j in range(k + 1, len(items)):
                    if items[j][0] in ("w", "bar"):
                        break
                    if items[j][0] == "i" and items[j][2] is not None:
                        needs.append(items[j][2])
                pos = [issued.index(x) for x in needs if x in issued]
                keep = len(issued) - 1 - max(pos) if pos else None
            if keep is None:
                a("s_nop 0")
            else:
                a(f"s_waitcnt lgkmcnt({keep})")
                for (ins, f) in issued[: len(issued) - keep]:
                    content[(ins & 1, f)] = (ins, f)
                del issued[: len(issued) - keep]
            if it_[0] == "bar":
                a("s_barrier")
    stamp()
    def wo_reads(y):
        g, f = order[y]
        return [f"ds_read_b64_tr_b16 {R(vWF + 8*(y&3) + 4*T + 2*u, 2)}, v{vWR[T + 2*(g>>3)]} offset:{(g&7)*8192 + f*2048 + u*1024}"
                for T in range(2) for u in range(2)]

    def omf(y, T):
        c = "0" if y == 0 else R(vACC[T], 16)
        return f"v_mfma_f32_32x32x16_bf16 {R(vACC[T],16)}, {R(vWF + 8*(y&3) + 4*T, 4)}, {R(freg(y),4)}, {c}"

    def chk(y):
        f = freg(y)
        if y & 3 == 0:
            return [f"v_max_u32 v{vMX}, v{f}, v{f+1}", f"v_max3_u32 v{vMX}, v{vMX}, v{f+2}, v{f+3}"]
        return [f"v_max3_u32 v{vMX}, v{vMX}, v{f}, v{f+1}", f"v_max3_u32 v{vMX}, v{vMX}, v{f+2}, v{f+3}"]

    for _ in range(P["early"]):
        issue_load()
    if P["early"] < 12:
        a(f"s_nop {11 - P['early']}")
    finish_head(1, [issue_load] * P["mid"])
    if P["estamp"]:
        stamp()
    WLA = P["wla"]
    for y in range(WLA):
        for t in wo_reads(y):
            a(t)
    CK = 5
    pend = None
    for y in range(64):
        rd = wo_reads(y + WLA) if y + WLA < 64 else []
        ck = chk(y + CK) if y + CK < 64 else []
        if y < 3:
            ck = [] if y < 2 else chk(4) + chk(5) + chk(6) + chk(7)
        if P["estamp"] and y in (4, 20, 36, 48):
            stamp()
        a(f"s_waitcnt lgkmcnt({4 * min(WLA - 1, 63 - y)})")
        a(omf(y, 0))
        if nx[0] < 64 and nx[0] <= y + 4 + P["la"]:
            issue_load()
        for t in rd[:2]:
            a(t)
        a(omf(y, 1))
        if nx[0] < 64 and nx[0] <= y + 4 + P["la"]:
            issue_load()
        if y == P["bar8"]:
            a("s_barrier")
        if pend:
            a(f"s_cbranch_vccnz L_retry{pend}")
            a.label(f"L_ok{pend}")
            pend = None
        for t in rd[2:]:
            a(t)
        if ck:
            vm.wait(f"o{y+CK}")
            for t in ck:
                a(t)
            if (y + CK) & 3 == 3:
                pend = (y + CK) >> 2
                a(f"v_cmp_eq_u32 vcc, -1, v{vMX}")
    assert nx[0] == 64
    stamp()
    a("s_nop 10")
    PK = 48
    for T in range(2):
        for z in range(2):
            for m in range(4 * z, 4 * z + 4):
                a(f"v_cvt_pk_bf16_f32 v{PK+8*T+m}, v{vACC[T]+2*m}, v{vACC[T]+2*m+1}")
            if T or z:
                a(f"v_xor_b32 v2, {16*(2*T+z)}, v{vTW}")
            a(f"ds_write_b128 v{2 if (T or z) else vTW}, {R(PK+8*T+4*z,4)}")
    a("s_waitcnt lgkmcnt(0)")
    for j in range(4):
        a(f"ds_read_b128 {R(64+4*j,4)}, v{vTR} offset:{j*1024}")
    pol = (" " + P["outpol"]) if P["outpol"] else ""
    for j in range(4):
        a(f"s_waitcnt lgkmcnt({3-j})")
        a(f"buffer_store_dwordx4 {R(64+4*j,4)}, v{vOUT}, {D(D_OUT)}, s{sOUTB} offen{pol}")
        if j < 3:
            a(f"s_add_u32 s{sOUTB}, s{sOUTB}, 16384")
    if P["diag"]:
        a("s_waitcnt vmcnt(0)")
        stamp()
        assert nst[0] <= 15
        a(f"s_add_u32 s{sW}, s{sW}, 1")
        stamp_out(f"s{sW}")
    a("s_endpgm")
    a.label("L_rare")

    a.label("L_spin")
    a(f"buffer_load_dword v{vPOLL}, v{vL4}, {D(D_DBG)}, 0 offen sc1")
    a(f"s_add_u32 s{sSPIN}, s{sSPIN}, {1024 if P['diag'] else 1}")
    a(f"s_cmp_gt_u32 s{sSPIN}, 0x400000")
    a("s_waitcnt vmcnt(0)")
    a("s_cbranch_scc1 L_spun")
    a(f"v_and_b32 v{vPOLL}, 0xffff, v{vPOLL}")
    a(f"v_cmp_gt_u32 vcc, 4, v{vPOLL}")
    a("s_cbranch_vccnz L_spin")
    a("s_branch L_spun")
    for i in range(1, 16):
        a.label(f"L_retry{i}")
        for y in range(4 * i, 4 * i + 4):
            a(oload(y))
        a(f"s_add_u32 s{sSPIN}, s{sSPIN}, 1")
        a(f"s_cmp_gt_u32 s{sSPIN}, 0x400000")
        a("s_waitcnt vmcnt(0)")
        a(f"s_cbranch_scc1 L_ok{i}")
        for y in range(4 * i, 4 * i + 4):
            for t in chk(y):
                a(t)
        a(f"v_cmp_eq_u32 vcc, -1, v{vMX}")
        a(f"s_cbranch_vccnz L_retry{i}")
        a(f"s_branch L_ok{i}")
    for q in range(2):
        sb, kb = (192, 208) if q == 0 else (vS[0], vKVB[0])
        a.label(f"L_truemax{q}")
        a("v_mov_b32 v2, 0xff800000")
        a(f"s_mov_b32 s{sCNT}, 0")
        a.label(f"L_tm1{q}")
        for f in range(2):
            a(f"buffer_load_dwordx4 {R(kb+4*f,4)}, v{vL16}, {D(D_WS)}, s{sCNT} offen offset:{f*1024} sc1")
        a("s_waitcnt vmcnt(0)")
        a(qk(q, sb, kb, 0, True)); a(qk(q, sb, kb, 1))
        a("s_nop 15")
        rowmax_tree(sb, 2, False)
        a(f"s_add_u32 s{sCNT}, s{sCNT}, 4096")
        a(f"s_cmp_lt_u32 s{sCNT}, {64*4096}")
        a(f"s_cbranch_scc1 L_tm1{q}")
        cfill(q, 2, 3)
        for i in range(16):
            a(f"v_mov_b32 v{vO[q]+i}, 0")
        for i in range(4):
            a(f"v_mov_b32 v{vL[q]+i}, 0")
        a(f"s_mov_b32 s{sCNT}, 0")
        a.label(f"L_tm2{q}")
        for f in range(4):
            a(f"buffer_load_dwordx4 {R(kb+4*f,4)}, v{vL16}, {D(D_WS)}, s{sCNT} offen offset:{f*1024} sc1")
        a("s_waitcnt vmcnt(0)")
        a(qk(q, sb, kb, 0)); a(qk(q, sb, kb, 1))
        a("s_nop 15")
        for i in range(16):
            a(f"v_exp_f32 v{sb+i}, v{sb+i}")
        a("s_nop 1")
        for s in range(2):
            a(pv(q, sb, kb, s)); a(ls(q, sb, s))
        a(f"s_add_u32 s{sCNT}, s{sCNT}, 4096")
        a(f"s_cmp_lt_u32 s{sCNT}, {64*4096}")
        a("s_nop 15")
        a(f"s_cbranch_scc1 L_tm2{q}")
        if P["lrows"] == 2:
            a(f"v_mov_b32 v3, v{vL[q]}")
            a("s_nop 1")
            a(f"v_permlane32_swap_b32 v{vL[q]}, v3")
        a(f"s_branch L_norm{q}")
    a.label("L_end")
    a("s_endpgm")

    if P["g16"]:
        import re
        new = []
        cnt = {}
        for l in a.lines:
            m = re.match(r"v_mfma_f32_32x32x16_bf16 v\[(\d+):\d+\], v\[(\d+):\d+\], v\[(\d+):\d+\], (.*)", l)
            if m:
                d, A, B = int(m.group(1)), int(m.group(2)), int(m.group(3))
                isq = d in vQA and not (80 <= B < 96)
                iso = d in vACC and vWF <= A < vWF + 32 and not (80 <= B < 96 and A < 128 and "L_norm1:" not in new)
                if (isq and P["g16"] & 1) or (iso and "L_norm1:" in new and P["g16"] & 2):
                    k = cnt.get(d, 0); cnt[d] = k + 1
                    for h in range(2):
                        dd = d + 8 * (k & 1) + 4 * h
                        c = "0" if k < 2 else R(dd, 4)
                        new.append(f"v_mfma_f32_16x16x32_bf16 {R(dd,4)}, {R(A ^ (4*h),4)}, {R(B,4)}, {c}")
                    continue
            new.append(l)
        a.lines = new
    if P["stubs"]:
        plant_stubs(a)
    bad = a.check()
    for b in bad[:8]:
        print("HAZARD", b, file=sys.stderr)
    assert not bad or P["dense"] or P["g16"], f"{len(bad)} hazards"

    head = open(os.path.join(os.path.dirname(os.path.abspath(__file__)), "..", "cdna_kernels", "standalone__grouped_kv_mqa__prompt.s.ref")).read().split("\n")
    hdr = [l for l in head if l.startswith(";") and "@launch" not in l and "Override" not in l and "grid=ceil" not in l]
    out = "\n".join(hdr) + f"\n; @launch grid=(256,1,1) block=(320,1,1) lds={LDS_BYTES}\n"
    out += f""".amdgcn_target "amdgcn-amd-amdhsa--gfx950"
.text
.globl {NAME}
.p2align 8
.type {NAME},@function
{NAME}:
"""
    out += a.text()
    out += f""".section .rodata,"a"
.p2align 6
.amdhsa_kernel {NAME}
  .amdhsa_next_free_vgpr 256
  .amdhsa_next_free_sgpr 102
  .amdhsa_accum_offset 256
  .amdhsa_group_segment_fixed_size 0
  .amdhsa_kernarg_size 64
  .amdhsa_user_sgpr_count 2
  .amdhsa_user_sgpr_kernarg_segment_ptr 1
  .amdhsa_system_sgpr_workgroup_id_x 1
.end_amdhsa_kernel
"""
    return out


if __name__ == "__main__":
    path = sys.argv[1]
    kw = {}
    for arg in sys.argv[2:]:
        k, v = arg.split("=")
        if k in ("mode", "outpol"):
            kw[k] = v
        elif k == "skip":
            kw[k] = tuple(int(x) for x in v.split(",") if x)
        else:
            kw[k] = int(v)
    open(path, "w").write(gen(**kw))
```

```python
import sys, math, struct, os
sys.path.insert(0, os.path.dirname(os.path.abspath(__file__)))
from asmlib import Asm, R

NAME = "standalone__grouped_kv_mqa__prompt_kernel"


def f2u(x):
    return struct.unpack("<I", struct.pack("<f", x))[0]


DEFAULTS = dict(
    diag=0,
    mode="A",
    rot_h=0, rot_x=1, rot_j=8, rot_y=0,
    force_fb=0,
    flag_it=3, poll_it=11, kv_it=13, xfirst=0, qlag=2, estamp=0, wq0at=48, ntile0=2,
    g0=4, grate=5, gmin=6, dele=0, nosync=0, satom=1, hshift=0, c3=8, c3at=2,
    early=4, mid=0, la=12, pre=6, J=8, bar8=20, astamp=0, dense=0, g16=0, stubs=1, po_at=1,
    xnt=0, touch=1, lrows=4, outpol="sc0 sc1", qstamp=0, czero=0, wla=3, lstamp=0,
)

S_X, S_WQ, S_WK, S_WV, S_WO, S_OUT, S_DBG, S_WS = 4, 6, 8, 10, 12, 14, 16, 18
D_X, D_WQ, D_WKV, D_WO, D_OUT, D_DBG, D_WS = 20, 24, 28, 32, 36, 40, 44
sW, sXCD, sIDX, sRB, sHP, sKEY16, sMAT, sROT = 48, 49, 50, 51, 52, 53, 54, 55
sT0, sT1, sT2, sT3 = 56, 57, 58, 59
sXB, sWB, sKVST, sOOWN, sOROW, sOUTB = 60, 61, 62, 63, 64, 65
sSO, sSPIN, sG, sCNT, sSC, sT4 = 66, 67, 68, 69, 70, 71
sPC = 72
sTM = 74
sOG = 80

vLANE, vL16 = 0, 1
vWR = [6, 7, 8, 9]
vOUT, vMX, vTW, vTR, vPOLL, vSTAMP = 10, 11, 12, 13, 14, 15
vS = [16, 32]
vC = [48, 64]
vQ = [80, 88]
vKVB = [96, 112]
vONES, vIDX = 128, 132
vAB = [133, 134, 135]
vO = [136, 152]
vL = [168, 172]
vOWN = 176
vRX = [176, 177, 178, 179]
vRW = [180, 181]
vKRX = [182, 183]
vKRW, vRED, vL4, vPW = 184, 185, 186, 187
vQA = [192, 208]
vDUM = [254, 255]
vACC = [16, 32]
vWF = 112
RING = list(range(192, 256, 4)) + list(range(48, 112, 4))
lQX = [6, 7, 8, 9]
lQW = [10, 11, 12, 13]
lWO = [16, 17, 18, 19]
lPO = 20

LDS_BYTES = 160 * 1024
SLOT = 24576
RED = 6 * SLOT
OBUF = 1 << 20
STAMP = 8 << 20
FL2 = 512 << 10


def srd(a, d, p, size):
    a(f"s_mov_b32 s{d}, s{p}")
    a(f"s_mov_b32 s{d+1}, s{p+1}")
    a(f"s_mov_b32 s{d+2}, {size}")
    a(f"s_mov_b32 s{d+3}, 0x20000")


def D(d):
    return f"s[{d}:{d+3}]"


class VM:
    def __init__(self, a):
        self.a, self.q = a, []

    def add(self, name):
        self.q.append(name)

    def wait(self, name, extra=""):
        idx = [k for k, n in enumerate(self.q) if n == name]
        if not idx:
            if extra:
                self.a("s_waitcnt" + extra)
            return
        n = len(self.q) - 1 - idx[-1]
        self.a(f"s_waitcnt vmcnt({min(n, 63)}){extra}")
        del self.q[: len(self.q) - min(n, 63)]

    def drain(self):
        self.a("s_waitcnt vmcnt(0)")
        self.q.clear()


def inst_sizes(lines):
    import subprocess, tempfile, re
    with tempfile.TemporaryDirectory() as d:
        body = [l for l in lines if not l.startswith(".p2align")]
        open(d + "/t.s", "w").write('.amdgcn_target "amdgcn-amd-amdhsa--gfx950"\n.text\n' + NAME + ":\n" + "\n".join(body) + "\n")
        subprocess.run(["clang", "-x", "assembler", "-target", "amdgcn-amd-amdhsa", "-mcpu=gfx950", "-c", d + "/t.s", "-o", d + "/t.o"], check=True)
        dis = subprocess.run(["llvm-objdump", "-d", "--mcpu=gfx950", d + "/t.o"], capture_output=True, text=True, check=True).stdout
    sz = [4 * len(m.group(1).split()) for m in re.finditer(r"// [0-9A-F]+: ((?:[0-9A-F]{8} ?)+)", dis)]
    out, k = [], 0
    for l in lines:
        t = l.split(";")[0].strip()
        if t.endswith(":") or t.startswith("."):
            out.append(0)
        else:
            out.append(sz[k]); k += 1
    assert k == len(sz)
    return out


def plant_stubs(a):
    NS = 12
    d = a.lines.index("@DISPATCH")
    a.lines[d:d + 1] = [x for k in range(NS) for x in (f"s_cmp_eq_u32 s{sT4}, {k}", "s_cbranch_scc1 L_pgret")]
    sz = inst_sizes(a.lines)
    c0, c1 = a.lines.index("L_compute:"), a.lines.index("L_rare:")
    off, new, n = 0, [], 0
    for i in range(c0, c1):
        if sz[i] and off >= 4096 * (n + 1):
            new += [f"L_pg{n}:", "s_cbranch_execz L_pgret"]
            off += 4
            n += 1
        new.append(a.lines[i])
        off += sz[i]
    assert n <= NS and d > c0
    a.lines[c0:c1] = new
    for k in range(NS):
        a.lines[d + 2 * k + 1] = f"s_cbranch_scc1 L_pg{k}" if k < n else "s_nop 0"


def gen(**kw):
    P = dict(DEFAULTS)
    P.update(kw)
    a = Asm()
    nst = [0]

    def stamp():
        if P["diag"]:
            i = nst[0]
            nst[0] += 1
            a(f"s_memrealtime s[{sTM}:{sTM+1}]")
            a(f"s_memtime s[{sTM+2}:{sTM+3}]")
            a("s_waitcnt lgkmcnt(0)")
            a(f"s_sub_u32 s{sTM+2}, s{sTM+2}, s{sTM+4}")
            a(f"v_writelane_b32 v{vSTAMP}, s{sTM}, {i}")
            a(f"v_writelane_b32 v{vSTAMP}, s{sTM+2}, {16+i}")

    def stamp_out(wave_reg):
        a(f"v_writelane_b32 v{vSTAMP}, s{sSPIN}, 15")
        a(f"s_mul_i32 s{sT0}, s2, 5")
        a(f"s_add_u32 s{sT0}, s{sT0}, {wave_reg}")
        a(f"s_lshl_b32 s{sT0}, s{sT0}, 8")
        a(f"s_add_u32 s{sT0}, s{sT0}, {STAMP}")
        a(f"v_lshlrev_b32 v2, 2, v{vLANE}")
        a(f"buffer_store_dword v{vSTAMP}, v2, {D(D_WS)}, s{sT0} offen")

    a("s_cmp_ge_u32 s2, 256")
    a("s_cbranch_scc1 L_end")
    a("s_load_dwordx16 s[4:19], s[0:1], 0")
    if P["diag"]:
        a(f"s_memrealtime s[{sTM}:{sTM+1}]")
        a(f"s_memtime s[{sTM+4}:{sTM+5}]")
        a(f"v_mov_b32 v{vSTAMP}, 0")
    a("v_lshrrev_b32 v2, 6, v0")
    a(f"s_and_b32 s{sXCD}, s2, 7")
    a(f"v_readfirstlane_b32 s{sW}, v2")
    a(f"s_lshr_b32 s{sIDX}, s2, 3")
    a(f"s_getpc_b64 s[{sPC}:{sPC+1}]")
    a.label("L_pc")
    a(f"v_and_b32 v{vLANE}, 63, v0")
    a(f"s_mov_b64 exec, 7")
    a(f"v_mad_u32_u24 v3, v2, 3, v{vLANE}")
    a(f"v_lshl_add_u32 v3, v3, 5, s{sIDX}")
    a(f"v_lshlrev_b32 v3, 7, v3")
    a(f"v_min_u32 v3, L_end-L_pc, v3")
    a(f"global_load_dword v{vDUM[0]}, v3, s[{sPC}:{sPC+1}]")
    a(f"s_mov_b64 exec, -1")
    a(f"v_lshlrev_b32 v{vL16}, 4, v{vLANE}")
    if P["mode"] == "A":
        a(f"s_lshr_b32 s{sT0}, s{sIDX}, 4")
        a(f"s_lshl_b32 s{sRB}, s{sXCD}, 1")
        a(f"s_add_u32 s{sRB}, s{sRB}, s{sT0}")
        if P["hshift"]:
            a(f"s_add_u32 s{sHP}, s{sIDX}, {P['hshift']}")
            a(f"s_and_b32 s{sHP}, s{sHP}, 15")
        else:
            a(f"s_and_b32 s{sHP}, s{sIDX}, 15")
    else:
        a(f"s_lshr_b32 s{sT0}, s{sIDX}, 3")
        a(f"s_lshr_b32 s{sRB}, s{sXCD}, 1")
        a(f"s_lshl_b32 s{sRB}, s{sRB}, 2")
        a(f"s_add_u32 s{sRB}, s{sRB}, s{sT0}")
        a(f"s_and_b32 s{sHP}, s{sXCD}, 1")
        a(f"s_lshl_b32 s{sHP}, s{sHP}, 3")
        a(f"s_and_b32 s{sT0}, s{sIDX}, 7")
        a(f"s_add_u32 s{sHP}, s{sHP}, s{sT0}")
    a(f"s_lshr_b32 s{sT0}, s{sHP}, 1")
    a(f"s_lshl_b32 s{sKEY16}, s{sRB}, 3")
    a(f"s_add_u32 s{sKEY16}, s{sKEY16}, s{sT0}")
    a(f"s_and_b32 s{sMAT}, s{sHP}, 1")
    a(f"s_mov_b32 s{sSPIN}, 0")
    a(f"s_cmp_lg_u32 s{sW}, 0")
    a("s_cbranch_scc1 L_compute")

    vm = VM(a)
    nst[0] = 1
    a(f"v_lshrrev_b32 v2, 3, v{vLANE}")
    a(f"v_lshrrev_b32 v3, 4, v{vLANE}")
    a(f"v_and_b32 v4, 7, v{vLANE}")
    a(f"v_xor_b32 v5, v4, v3")
    a(f"v_lshlrev_b32 v2, 11, v2")
    a(f"v_lshl_add_u32 v{lQX[0]}, v5, 4, v2")
    a(f"v_xor_b32 v{lQX[1]}, 64, v{lQX[0]}")
    a(f"v_add_u32 v{lQX[1]}, {8*2048-1024}, v{lQX[1]}")
    a(f"s_lshl_b32 s{sT2}, s{sKEY16}, 15")
    a(f"s_lshl_b32 s{sT3}, s{sMAT}, 8")
    a(f"s_add_u32 s{sT2}, s{sT2}, s{sT3}")
    a(f"s_lshl_b32 s{sT3}, s{sMAT}, 13")
    a(f"s_mov_b32 s{D_X+2}, {2048*2048}")
    a(f"s_mov_b32 s{D_X+3}, 0x20000")
    a(f"s_mov_b32 s{D_WKV+2}, 65536")
    a(f"s_mov_b32 s{D_WKV+3}, 0x20000")
    a("s_waitcnt lgkmcnt(0)")
    if P["diag"]:
        a(f"v_writelane_b32 v{vSTAMP}, s{sTM}, 0")
    a(f"s_mov_b32 s{D_X}, s{S_X}")
    a(f"s_mov_b32 s{D_X+1}, s{S_X+1}")
    a(f"s_cmp_eq_u32 s{sMAT}, 0")
    a(f"s_cselect_b32 s{D_WKV}, s{S_WK}, s{S_WV}")
    a(f"s_cselect_b32 s{D_WKV+1}, s{S_WK+1}, s{S_WV+1}")

    def kvhalf(hf):
        for w in range(4):
            base = (2 + 2 * hf) * SLOT + w * 12288
            for q in range(2):
                a(f"s_mov_b32 m0, {base + q*2048}")
                a(f"s_add_u32 s{sSO}, s{sT2}, {w*512 + q*128}")
                for j in range(2):
                    a(f"buffer_load_dwordx4 v{lQX[j]}, {D(D_X)}, s{sSO} offen offset:{j*1024} lds")
                    vm.add(f"h{hf}")
                if P["xfirst"] and hf == 0:
                    continue
                a(f"s_mov_b32 m0, {base + 4096 + q*4096}")
                a(f"s_add_u32 s{sSO}, s{sT3}, {w*16384 + q*4096}")
                for j in range(4):
                    a(f"buffer_load_dwordx4 v{vL16}, {D(D_WKV)}, s{sSO} offen offset:{j*1024} lds")
                    vm.add(f"h{hf}")
        if P["xfirst"] and hf == 0:
            for w in range(4):
                base = (2 + 2 * hf) * SLOT + w * 12288
                for q in range(2):
                    a(f"s_mov_b32 m0, {base + 4096 + q*4096}")
                    a(f"s_add_u32 s{sSO}, s{sT3}, {w*16384 + q*4096}")
                    for j in range(4):
                        a(f"buffer_load_dwordx4 v{vL16}, {D(D_WKV)}, s{sSO} offen offset:{j*1024} lds")
                        vm.add(f"h{hf}")

    def wq_setup():
        srd(a, D_WQ, S_WQ, 1024 * 2048)
        a(f"v_and_b32 v5, 1, v3")
        a(f"v_lshlrev_b32 v14, 2, v5")
        a(f"v_xor_b32 v14, v4, v14")
        a(f"v_lshl_add_u32 v{lQW[0]}, v14, 4, v2")
        for j in range(1, 4):
            a(f"v_add_u32 v{lQW[j]}, {j*(8*2048-1024)}, v{lQW[0]}")
        a(f"s_lshr_b32 s{sT0}, s{sRB}, 1")
        a(f"s_mul_i32 s{sROT}, s{sT0}, {P['rot_x']}")
        if P["rot_y"]:
            a(f"s_lshr_b32 s{sT0}, s{sRB}, 2")
            a(f"s_mul_i32 s{sT0}, s{sT0}, {P['rot_y']}")
            a(f"s_add_u32 s{sROT}, s{sROT}, s{sT0}")
        a(f"s_and_b32 s{sT0}, s{sRB}, 1")
        a(f"s_mul_i32 s{sT0}, s{sT0}, {P['rot_j']}")
        a(f"s_add_u32 s{sROT}, s{sROT}, s{sT0}")
        a(f"s_mul_i32 s{sT0}, s{sHP}, {P['rot_h']}")
        a(f"s_add_u32 s{sROT}, s{sROT}, s{sT0}")
        a(f"s_lshl_b32 s{sXB}, s{sRB}, 18")
        a(f"s_lshl_b32 s{sWB}, s{sHP}, 7")

    def slice_ks(ks):
        a(f"s_add_u32 s{sT0}, s{sROT}, {ks}")
        a(f"s_and_b32 s{sT0}, s{sT0}, 15")

    def slice_w(ks):
        slot = (ks % 6) * SLOT
        a(f"s_lshl_b32 s{sSO}, s{sT0}, 17")
        a(f"s_add_u32 s{sSO}, s{sSO}, s{sWB}")
        for g in range(2):
            a(f"s_mov_b32 m0, {slot + 16384 + g*4096}")
            if g:
                a(f"s_add_u32 s{sSO}, s{sSO}, {32*2048}")
            else:
                a("s_nop 0")
            for j in range(4):
                a(f"buffer_load_dwordx4 v{lQW[j]}, {D(D_WQ)}, s{sSO} offen offset:{j*1024} lds")
                vm.add(f"q{ks}")

    def slice_x(ks):
        slot = (ks % 6) * SLOT
        a(f"s_lshl_b32 s{sSO}, s{sT0}, 7")
        for w in range(4):
            a(f"s_mov_b32 m0, {slot + w*4096}")
            a(f"s_add_u32 s{sSO}, s{sSO}, " + (f"s{sXB}" if w == 0 else "65536"))
            for j in range(4):
                a(f"buffer_load_dwordx4 v{lQX[j]}, {D(D_X)}, s{sSO} offen offset:{j*1024} lds")
                vm.add(f"q{ks}")

    def qslice(ks):
        slice_ks(ks)
        slice_w(ks)
        slice_x(ks)

    def room(n):
        if len(vm.q) + n > 63:
            k = 63 - n
            a(f"s_waitcnt vmcnt({k})")
            del vm.q[: len(vm.q) - k]

    mark = len(a.lines)
    kvhalf(0)
    body = a.lines[mark:]
    del a.lines[mark:]
    vm.q = ["pf"]
    cnt = 0
    for ln in body:
        a(ln)
        if ln.startswith("buffer_load"):
            vm.add("h0"); cnt += 1
            if cnt == P["wq0at"]:
                wq_setup()
                slice_ks(0)
                slice_w(0)
    a(f"s_xor_b32 s{sT2}, s{sT2}, 256")
    a(f"s_xor_b32 s{sT3}, s{sT3}, 8192")
    if P["lstamp"]:
        stamp()
    a(f"v_add_u32 v{lQX[2]}, {16*2048-2048}, v{lQX[0]}")
    a(f"v_add_u32 v{lQX[3]}, {16*2048-2048}, v{lQX[1]}")
    mark = len(a.lines)
    q_before = list(vm.q)
    kvhalf(1)
    body = a.lines[mark:]
    del a.lines[mark:]
    vm.q = q_before
    cnt = 0
    for ln in body:
        if ln.startswith("buffer_load"):
            if cnt == 6:
                room(18)
            a(ln); vm.add("h1"); cnt += 1
            if cnt == 24:
                vm.wait("h0")
                stamp()
                a("s_barrier")
        else:
            a(ln)
    room(16)
    slice_x(0)
    slice_ks(1)
    room(8)
    slice_w(1)
    vm.wait("h1")
    if P["lstamp"]:
        stamp()
    a("s_barrier")
    slice_x(1)
    srd(a, D_WS, S_WS, 16 << 20)
    srd(a, D_WO, S_WO, 1024 * 2048)
    srd(a, D_DBG, S_DBG, 256)
    a(f"v_lshlrev_b32 v14, 1, v5")
    a(f"v_xor_b32 v14, v4, v14")
    a(f"v_lshl_add_u32 v{lWO[0]}, v14, 4, v2")
    for j in range(1, 4):
        a(f"v_add_u32 v{lWO[j]}, {j*(8*2048-1024)}, v{lWO[0]}")
    for i in range(4):
        a(f"v_mov_b32 v{lPO+i}, -1")
    room(24)
    qslice(2)
    a("s_barrier")
    stamp()

    def kvunit(u, lo=0, hi=8):
        slot = ((3 + u) % 5) * 32768
        for t in range(lo, hi):
            a(f"s_mov_b32 m0, {slot + t*4096}")
            a(f"s_mov_b32 s{sSO}, {u*32768 + t*4096}")
            for j in range(4):
                a(f"buffer_load_dwordx4 v{vL16}, {D(D_WS)}, s{sSO} offen offset:{j*1024} sc1 lds")
                vm.add(f"u{u}")

    def wounit(i):
        for g in range(4 * i, 4 * i + 4):
            a(f"s_add_u32 s{sG}, s{sHP}, {g}")
            a(f"s_and_b32 s{sG}, s{sG}, 15")
            a(f"s_lshl_b32 s{sG}, s{sG}, 17")
            a(f"s_add_u32 s{sG}, s{sG}, s{sWB}")
            for hf in range(2):
                a(f"s_mov_b32 m0, {32768 + g*8192 + hf*4096}")
                if hf:
                    a(f"s_add_u32 s{sG}, s{sG}, {32*2048}")
                else:
                    a("s_nop 0")
                for j in range(4):
                    a(f"buffer_load_dwordx4 v{lWO[j]}, {D(D_WO)}, s{sG} offen offset:{j*1024} lds")
                    vm.add(f"wo{i}")

    def poison():
        a(f"s_lshl_b32 s{sOOWN}, s{sHP}, 12")
        a(f"s_add_u32 s{sOOWN}, s{sOOWN}, s{sXB}")
        a(f"s_add_u32 s{sOOWN}, s{sOOWN}, {OBUF}")
        room(16)
        for w in range(4):
            for j in range(4):
                a(f"buffer_store_dwordx4 {R(lPO,4)}, v{vL16}, {D(D_WS)}, s{sOOWN} offen offset:{j*1024} sc1")
                vm.add("po")
            if w < 3:
                a(f"s_add_u32 s{sOOWN}, s{sOOWN}, 65536")

    groups = []

    def capture(fn, sl):
        mark = len(a.lines)
        keep = list(vm.q)
        fn()
        body = a.lines[mark:]
        names = vm.q[len(keep):]
        del a.lines[mark:]
        vm.q = keep
        cur, n = [], 0
        for ln in body:
            cur.append(ln)
            if ln.startswith("buffer_load"):
                n += 1
                if n % 4 == 0:
                    groups.append((sl, names[n - 1], cur))
                    cur = []
        assert not cur

    for ks in range(3, 16):
        if ks == 15:
            capture(lambda: kvunit(0, 0, P["ntile0"]), None)
        capture(lambda: qslice(ks), ks)
    capture(lambda: kvunit(0, P["ntile0"], 8), None)
    gi = 0
    for it in range(16):
        need = max([k + 1 for k, g in enumerate(groups) if g[0] is not None and g[0] <= it], default=6 * (it - 2))
        want = max(P["g0"] + P["grate"] * it, need + P["gmin"])
        while gi < min(want, len(groups)):
            sl, name, lines = groups[gi]
            if sl is None:
                if it <= P["kv_it"]:
                    break
            elif not (sl <= it + 4 or sl <= 5):
                break
            room(4)
            for ln in lines:
                a(ln)
            for _ in range(4):
                vm.add(name)
            gi += 1
        assert gi >= need
        vm.wait(f"q{it}")
        if P["lstamp"] and it in (0, 4, 8, 12, 15):
            stamp()
        a("s_barrier")
        if P["satom"] and it == P["flag_it"]:
            a(f"s_lshr_b32 s{sCNT}, s{sKEY16}, 1")
            a(f"s_lshl_b32 s{sCNT}, s{sCNT}, 2")
            a(f"s_mov_b32 s{sT1}, 1")
            a(f"s_atomic_add s{sT1}, s[{S_DBG}:{S_DBG+1}], s{sCNT}")
    while gi < len(groups):
        room(4)
        for ln in groups[gi][2]:
            a(ln)
        for _ in range(4):
            vm.add(groups[gi][1])
        gi += 1
    if P["po_at"] == 0:
        poison()
    vm.wait("u0")
    a("s_barrier")
    kvunit(1)
    stamp()
    a("s_waitcnt lgkmcnt(0)")
    a(f"s_lshl_b32 s{sT1}, s{sRB}, 11")
    a(f"s_add_u32 s{sT1}, s{sT1}, {FL2}")
    a(f"s_add_u32 s{sCNT}, s{sT1}, s{sWB}")
    a(f"v_and_b32 v14, 15, v{vLANE}")
    a(f"v_lshlrev_b32 v14, 7, v14")
    a(f"v_mov_b32 v5, 1")
    for p in range(8):
        if p == 0:
            room(32)
            kvunit(2)
        elif p == 1:
            if P["po_at"] == 1:
                poison()
            room(32)
            kvunit(3)
        elif p == 2:
            vm.wait("po")
            a("s_mov_b64 exec, 1")
            a(f"buffer_store_dword v5, v14, {D(D_WS)}, s{sCNT} offen sc1")
            vm.add("at")
            a("s_mov_b64 exec, -1")
            room(32)
            kvunit(4)
            room(32)
            kvunit(5)
        elif p == 3:
            room(32)
            kvunit(6)
            room(32)
            kvunit(7)
        else:
            room(32)
            wounit(p - 4)
        if p == 6:
            a.label("L_poll2")
            a(f"buffer_load_dword v5, v14, {D(D_WS)}, s{sT1} offen sc1")
            a(f"s_add_u32 s{sSPIN}, s{sSPIN}, 1")
            a(f"s_cmp_gt_u32 s{sSPIN}, 0x400000")
            a("s_waitcnt vmcnt(0)")
            a("s_cbranch_scc1 L_poll2x")
            a("v_cmp_ne_u32 vcc, 1, v5")
            a("s_cbranch_vccnz L_poll2")
            a.label("L_poll2x")
        if p < 4:
            vm.wait(f"u{p+1}")
        elif p == 4:
            vm.wait("u7")
        elif p == 5:
            vm.wait("wo0")
        else:
            vm.drain()
        a("s_barrier")
    if P["diag"]:
        stamp()
        stamp_out("0")
    a("s_endpgm")

    a(".p2align 12")
    a.label("L_compute")
    vm = VM(a)
    nst[0] = 1
    a(f"s_sub_u32 s{sW}, s{sW}, 1")
    vm.add("pf")
    a(f"s_lshl_b32 s{sT0}, s{sIDX}, 2")
    a(f"s_add_u32 s{sT0}, s{sT0}, s{sW}")
    a("s_mov_b64 exec, 0xff")
    a(f"s_and_b32 s{sT0}, s{sT0}, 63")
    a(f"s_lshl_b32 s{sT0}, s{sT0}, 10")
    a(f"v_lshl_add_u32 v3, v{vLANE}, 7, s{sT0}")
    a(f"s_cmp_lt_u32 s{sIDX}, 16")
    a("s_waitcnt lgkmcnt(0)")
    if P["touch"]:
        a(f"s_cselect_b32 s{sT2}, s{S_WK}, s{S_WV}")
        a(f"s_cselect_b32 s{sT3}, s{S_WK+1}, s{S_WV+1}")
        a(f"global_load_dword v{vDUM[1]}, v3, s[{sT2}:{sT3}]")
        vm.add("pf")
    a("s_mov_b64 exec, -1")

    def c3touch():
        a(f"s_mov_b64 exec, {hex((1 << P['c3']) - 1)}")
        a(f"global_load_dword v253, v252, s[{S_WQ}:{S_WQ+1}]")
        a("s_mov_b64 exec, -1")

    if P["c3"]:
        a(f"s_lshl_b32 s{sT0}, s{sIDX}, 2")
        a(f"s_add_u32 s{sT0}, s{sT0}, s{sW}")
        a(f"s_lshr_b32 s{sT2}, s{sT0}, 6")
        a(f"s_lshl_b32 s{sT2}, s{sT2}, 3")
        a(f"s_add_u32 s{sT2}, s{sT2}, s{sXCD}")
        a(f"s_add_u32 s{sT2}, s{sT2}, 7")
        a(f"s_and_b32 s{sT0}, s{sT0}, 63")
        a(f"s_lshl_b32 s{sT0}, s{sT0}, 11")
        a(f"s_add_u32 s{sT0}, s{sT0}, 384")
        a(f"v_lshrrev_b32 v3, 1, v{vLANE}")
        a(f"v_sub_u32 v3, s{sT2}, v3")
        a(f"v_and_b32 v3, 15, v3")
        a(f"v_lshlrev_b32 v3, 17, v3")
        a(f"v_and_b32 v4, 1, v{vLANE}")
        a(f"v_lshl_add_u32 v3, v4, 10, v3")
        a(f"v_add_u32 v252, s{sT0}, v3")
        if P["c3at"] == 0:
            c3touch()
    if P["diag"]:
        a(f"v_writelane_b32 v{vSTAMP}, s{sTM}, 0")
    srd(a, D_WS, S_WS, 16 << 20)
    srd(a, D_DBG, S_DBG, 256)
    srd(a, D_OUT, S_OUT, 2048 * 2048)
    a(f"s_lshl_b32 s{sXB}, s{sRB}, 2")
    a(f"s_add_u32 s{sXB}, s{sXB}, s{sW}")
    a(f"s_lshl_b32 s{sXB}, s{sXB}, 16")
    a(f"s_lshl_b32 s{sT0}, s{sHP}, 7")
    a(f"s_add_u32 s{sOUTB}, s{sXB}, s{sT0}")
    a(f"s_add_u32 s{sOROW}, s{sXB}, {OBUF}")
    for g in range(16):
        a(f"s_add_u32 s{sT0}, s{sHP}, {g}")
        a(f"s_and_b32 s{sT0}, s{sT0}, 15")
        a(f"s_lshl_b32 s{sT0}, s{sT0}, 12")
        a(f"s_add_u32 s{sOG+g}, s{sT0}, s{sOROW}")
    a(f"s_mul_i32 s{sT1}, s{sW}, 12288")
    a(f"s_add_u32 s{sT1}, s{sT1}, {2*SLOT}")
    a(f"v_lshrrev_b32 v3, 4, v{vLANE}")
    a(f"v_and_b32 v2, 15, v{vLANE}")
    a(f"v_lshrrev_b32 v4, 1, v2")
    a(f"v_xor_b32 v4, v4, v3")
    a(f"v_lshlrev_b32 v4, 4, v4")
    a(f"v_lshl_add_u32 v4, v2, 7, v4")
    a(f"v_add_u32 v{vKRX[0]}, s{sT1}, v4")
    a(f"v_xor_b32 v{vKRX[1]}, 64, v{vKRX[0]}")
    a(f"v_lshrrev_b32 v4, 2, v2")
    a(f"v_lshl_add_u32 v5, v3, 3, v4")
    a(f"v_lshlrev_b32 v5, 6, v5")
    a(f"v_and_b32 v2, 3, v{vLANE}")
    a(f"v_lshl_add_u32 v5, v2, 3, v5")
    a(f"s_add_u32 s{sT0}, s{sT1}, 4096")
    a(f"v_add_u32 v{vKRW}, s{sT0}, v5")
    a(f"v_lshrrev_b32 v16, 5, v{vLANE}")
    a(f"v_lshl_add_u32 v5, v16, 3, v4")
    a(f"v_lshlrev_b32 v5, 7, v5")
    a(f"v_lshl_add_u32 v5, v2, 3, v5")
    a(f"v_and_b32 v17, 1, v3")
    a(f"v_lshl_add_u32 v5, v17, 5, v5")
    a(f"v_lshrrev_b32 v18, 1, v4")
    a(f"v_lshl_add_u32 v5, v18, 6, v5")
    a(f"v_add_u32 v{vRW[0]}, 16384, v5")
    a(f"v_xor_b32 v{vRW[1]}, 64, v{vRW[0]}")
    a(f"v_lshl_add_u32 v5, v16, 2, v4")
    a(f"v_lshlrev_b32 v5, 7, v5")
    a(f"v_and_b32 v19, 1, v2")
    a(f"v_lshl_add_u32 v5, v19, 6, v5")
    a(f"v_lshl_add_u32 v5, v18, 5, v5")
    a(f"v_lshl_add_u32 v5, v17, 4, v5")
    a(f"v_lshrrev_b32 v20, 1, v2")
    a(f"v_lshl_add_u32 v5, v20, 3, v5")
    a(f"v_add_u32 v{vWR[0]}, 32768, v5")
    a(f"v_xor_b32 v{vWR[1]}, 32, v{vWR[0]}")
    a(f"v_add_u32 v{vWR[2]}, 65536, v{vWR[0]}")
    a(f"v_add_u32 v{vWR[3]}, 65536, v{vWR[1]}")
    a(f"s_lshl_b32 s{sT4}, s{sW}, 12")
    a(f"v_and_b32 v5, 31, v{vLANE}")
    a(f"v_bfe_u32 v21, v5, 1, 3")
    a(f"v_xor_b32 v21, v21, v16")
    a(f"v_lshlrev_b32 v21, 4, v21")
    a(f"v_lshl_add_u32 v21, v5, 7, v21")
    a(f"v_add_u32 v{vRX[0]}, s{sT4}, v21")
    for t in range(1, 4):
        a(f"v_xor_b32 v{vRX[t]}, {32*t}, v{vRX[0]}")
    a(f"v_and_b32 v21, 7, v{vLANE}")
    a(f"v_lshlrev_b32 v22, 2, v16")
    a(f"v_xor_b32 v22, v22, v21")
    a(f"v_lshlrev_b32 v22, 4, v22")
    a(f"v_lshl_add_u32 v22, v5, 7, v22")
    a(f"v_add_u32 v{vTW}, s{sT4}, v22")
    a(f"v_lshrrev_b32 v22, 3, v{vLANE}")
    a(f"v_xor_b32 v23, v22, v21")
    a(f"v_lshlrev_b32 v23, 4, v23")
    a(f"v_lshl_add_u32 v23, v22, 7, v23")
    a(f"v_add_u32 v{vTR}, s{sT4}, v23")
    a(f"v_lshlrev_b32 v22, 11, v22")
    a(f"v_lshl_add_u32 v{vOUT}, v21, 4, v22")
    a(f"s_lshr_b32 s{sT0}, s{sW}, 1")
    a(f"s_and_b32 s{sT2}, s{sW}, 1")
    a(f"s_lshr_b32 s{sCNT}, s{sKEY16}, 1")
    a(f"s_lshl_b32 s{sKVST}, s{sCNT}, 12")
    a(f"s_and_b32 s{sT3}, s{sKEY16}, 1")
    a(f"s_cmp_eq_u32 s{sMAT}, 0")
    a(f"s_cselect_b32 s{sSO}, s{sT0}, s{sT2}")
    a(f"s_cselect_b32 s{sG}, s{sT2}, s{sT0}")
    a(f"s_cselect_b32 s{sT0}, 8, 9")
    a(f"s_cselect_b32 s{sT2}, 9, 8")
    a(f"s_cselect_b32 s{sT4}, 8, 10")
    a(f"s_cselect_b32 s{sWB}, 0, 2048")
    a(f"s_cselect_b32 s{sSC}, {hex(f2u(math.log2(math.e) / math.sqrt(32.0)))}, 1.0")
    a(f"s_lshl_b32 s{sSO}, s{sSO}, 10")
    a(f"s_lshl_b32 s{sG}, s{sG}, s{sT0}")
    a(f"s_add_u32 s{sSO}, s{sSO}, s{sG}")
    a(f"s_add_u32 s{sSO}, s{sSO}, {RED}")
    a(f"v_lshrrev_b32 v4, 2, v{vLANE}")
    a(f"v_lshlrev_b32 v4, 4, v4")
    a(f"v_lshl_add_u32 v4, v19, 3, v4")
    a(f"v_lshlrev_b32 v5, s{sT2}, v20")
    a(f"v_add3_u32 v{vRED}, v4, v5, s{sSO}")
    a(f"s_lshl_b32 s{sT0}, s{sW}, s{sT2}")
    a(f"s_lshl_b32 s{sT3}, s{sT3}, s{sT4}")
    a(f"s_add_u32 s{sKVST}, s{sKVST}, s{sWB}")
    a(f"s_add_u32 s{sKVST}, s{sKVST}, s{sT0}")
    a(f"s_add_u32 s{sKVST}, s{sKVST}, s{sT3}")
    a(f"v_lshlrev_b32 v{vL4}, 2, v{vLANE}")
    a(f"s_lshl_b32 s{sCNT}, s{sCNT}, 2")
    a(f"s_lshl_b32 s{sT2}, s{sW}, 11")
    a(f"s_add_u32 s{sT2}, s{sT2}, {RED}")
    a(f"v_add_u32 v{vPW}, s{sT2}, v{vL16}")
    a(f"v_mov_b32 v{vIDX}, 0xdddddddd")
    a(f"v_mov_b32 v{vAB[0]}, v{vL16}")
    a(f"v_add_u32 v{vAB[1]}, 65536, v{vL16}")
    a(f"v_add_u32 v{vAB[2]}, 131072, v{vL16}")
    a(f"v_bfe_u32 v4, v{vLANE}, 2, 1")
    a(f"v_mov_b32 v5, 0x3f803f80")
    if P["lrows"] == 2:
        a(f"v_and_b32 v2, 11, v{vLANE}")
    if P["lrows"] <= 4:
        a(f"v_cmp_eq_u32 vcc, 0, v2")
        a("s_nop 1")
        a(f"v_cndmask_b32 v5, 0, v5, vcc")
    a(f"v_mul_lo_u32 v{vONES+2}, v4, v5")
    a(f"v_mov_b32 v{vONES+3}, v{vONES+2}")
    a(f"v_sub_u32 v{vONES}, v5, v{vONES+2}")
    a(f"v_mov_b32 v{vONES+1}, v{vONES}")
    for i in range(vO[0], vL[1] + 4):
        a(f"v_mov_b32 v{i}, 0")
    if P["stubs"]:
        a("s_waitcnt vmcnt(0)")
        a(f"s_sub_u32 s{sT4}, s{sW}, 4")
        a("s_mov_b64 exec, 0")
        a.label("L_pgret")
        a(f"s_add_u32 s{sT4}, s{sT4}, 4")
        a("@DISPATCH")
        a("s_mov_b64 exec, -1")
    XF, WF, KA = 16, 48, 112

    def kv_reads(t):
        hb = (t >> 2) * 2 * SLOT
        a(f"ds_read_b128 {R(XF+4*t,4)}, v{vKRX[t&1]} offset:{hb + ((t>>1)&1)*2048}")
        for dt in range(2):
            for u in range(2):
                a(f"ds_read_b64_tr_b16 {R(WF+8*t+4*dt+2*u,2)}, v{vKRW} offset:{hb + (t&3)*2048+u*256+dt*32}")

    def kv_mfma(t, mat):
        for dt in range(2):
            w, x = R(WF + 8 * t + 4 * dt, 4), R(XF + 4 * t, 4)
            A, B = (w, x) if mat == 0 else (x, w)
            c = "0" if t == 0 else R(KA + 4 * dt, 4)
            a(f"v_mfma_f32_16x16x32_bf16 {R(KA+4*dt,4)}, {A}, {B}, {c}")

    a(f"s_cmp_eq_u32 s{sMAT}, 0")
    a("s_cbranch_scc0 L_vmat")
    for mat in range(2):
        if mat:
            a.label("L_vmat")
        for half in range(2):
            a("s_barrier")
            if P["c3"] and P["c3at"] == half + 1:
                c3touch()
            t0 = 4 * half
            kv_reads(t0); kv_reads(t0 + 1); kv_reads(t0 + 2)
            a("s_waitcnt lgkmcnt(10)")
            kv_mfma(t0, mat)
            kv_reads(t0 + 3)
            a("s_waitcnt lgkmcnt(10)")
            kv_mfma(t0 + 1, mat)
            a("s_waitcnt lgkmcnt(5)")
            kv_mfma(t0 + 2, mat)
            a("s_waitcnt lgkmcnt(0)")
            kv_mfma(t0 + 3, mat)
        if mat == 0:
            a("s_branch L_kvdone")
    a.label("L_kvdone")
    a("s_nop 6")
    a(f"ds_write_b128 v{vPW}, {R(KA,4)}")
    a(f"ds_write_b128 v{vPW}, {R(KA+4,4)} offset:1024")
    a("s_waitcnt lgkmcnt(0)")
    a("s_barrier")
    for p in range(4):
        a(f"ds_read_b64 {R(112+2*p,2)}, v{vRED} offset:{p*2048}")
    a("s_waitcnt lgkmcnt(2)")
    a("v_add_f32 v112, v112, v114")
    a("v_add_f32 v113, v113, v115")
    a("s_waitcnt lgkmcnt(0)")
    a("v_add_f32 v116, v116, v118")
    a("v_add_f32 v117, v117, v119")
    a("v_add_f32 v112, v112, v116")
    a("v_add_f32 v113, v113, v117")
    a(f"v_mul_f32 v112, s{sSC}, v112")
    a(f"v_mul_f32 v113, s{sSC}, v113")
    a("v_cvt_pk_bf16_f32 v4, v112, v113")
    if not P["nosync"] & 4:
        a(f"buffer_store_dword v4, v{vL4}, {D(D_WS)}, s{sKVST} offen sc1")
    a(f"s_cmp_lg_u32 s{sW}, 0")
    a("s_cbranch_scc1 L_nrst")
    a(f"s_lshl_b32 s{sT0}, s{sRB}, 4")
    a(f"s_add_u32 s{sT0}, s{sT0}, s{sHP}")
    a(f"s_lshl_b32 s{sT0}, s{sT0}, 7")
    a(f"s_add_u32 s{sT0}, s{sT0}, {FL2}")
    a("s_mov_b64 exec, 1")
    a(f"buffer_store_dword v{vL4}, v{vL4}, {D(D_WS)}, s{sT0} offen sc1")
    a("s_mov_b64 exec, -1")
    a.label("L_nrst")
    stamp()
    QB = [16, 64]

    def q_read_list(ks):
        b = QB[ks & 1]
        off = (ks % 2) * SLOT
        L = []
        for t in range(4):
            L.append(f"ds_read_b128 {R(b+4*t,4)}, v{vRX[t]} offset:{off}")
            for hd in range(2):
                for u in range(2):
                    L.append(f"ds_read_b64_tr_b16 {R(b+16+8*t+4*hd+2*u,2)}, v{vRW[hd]} offset:{off+t*2048+u*512}")
        return L

    def q_mfma_list(ks):
        b = QB[ks & 1]
        L = []
        for t in range(4):
            for hd in range(2):
                c = "0" if (ks == 0 and t == 0) else R(vQA[hd], 16)
                L.append(f"v_mfma_f32_32x32x16_bf16 {R(vQA[hd],16)}, {R(b+16+8*t+4*hd,4)}, {R(b+4*t,4)}, {c}")
        return L

    for it in range(16):
        if it == P["kv_it"]:
            a(f"s_cmp_lg_u32 s{sW}, 0")
            a("s_cbranch_scc1 L_spun")
            a("s_waitcnt vmcnt(0)")
            a(f"v_cmp_gt_u32 vcc, 4, v{vPOLL}")
            if not P["nosync"]:
                a("s_cbranch_vccnz L_spin")
            a.label("L_spun")
        a("s_waitcnt vmcnt(0) lgkmcnt(0)" if it == P["flag_it"] else "s_waitcnt lgkmcnt(0)")
        a("s_barrier")
        if P["qstamp"] and it in (0, 4, 8, 12):
            stamp()
        reads = q_read_list(it)
        LAG = P["qlag"]
        old = q_mfma_list(it - 1)[8 - LAG:] if it >= 1 else []
        new = q_mfma_list(it)[: 8 - LAG]
        last = it == 15
        ri = 0
        nfirst = 15 if LAG >= 4 else 10
        for m in range(max(len(old), 1)):
            if old:
                a(old[m])
            rt = (nfirst * (m + 1) + len(old) - 1) // len(old) if old else nfirst
            while ri < rt:
                a(reads[ri]); ri += 1
        for m in range(len(new)):
            if m % 2 == 0:
                a(f"s_waitcnt lgkmcnt({ri - 5 * (m // 2 + 1)})")
            a(new[m])
            for _ in range(3):
                if ri < 20:
                    a(reads[ri]); ri += 1
        assert ri == 20
        if it % 2 == 1 and not last:
            d = 2 * SLOT if it % 6 != 5 else -4 * SLOT
            for v in vRX + vRW:
                a(f"v_add_u32 v{v}, {d}, v{v}")
        if it in (P["flag_it"], P["poll_it"]):
            a(f"s_cmp_lg_u32 s{sW}, 0")
            a(f"s_cbranch_scc1 L_nf{it}")
            if it == P["flag_it"]:
                a("s_mov_b64 exec, 1")
                a(f"v_mov_b32 v2, s{sCNT}")
                a("v_mov_b32 v3, 1")
                if not P["nosync"] & 1 and not P["satom"]:
                    a(f"buffer_atomic_add v3, v2, {D(D_DBG)}, 0 offen sc1")
                a("s_mov_b64 exec, -1")
            elif not P["nosync"] & 2:
                a(f"buffer_load_dword v{vPOLL}, v{vL4}, {D(D_DBG)}, 0 offen sc1")
            a.label(f"L_nf{it}")
    mf = q_mfma_list(15)[8 - P["qlag"]:]
    a("s_waitcnt lgkmcnt(0)")
    for m in mf[0::2] + mf[1::2]:
        a(m)
    stamp()

    def kvread(inst, tt, f):
        addr = ((3 + (tt >> 3)) % 5) * 32768 + (tt & 7) * 4096 + f * 1024
        return f"ds_read_b128 {R(vKVB[inst&1]+4*f,4)}, v{vAB[addr>>16]} offset:{addr&0xffff}"

    def qk(q, sb, kb, s, czero=False):
        c = R(sb, 16) if s else ("0" if (czero or P["czero"]) else R(vC[q], 16))
        return f"v_mfma_f32_32x32x16_bf16 {R(sb,16)}, {R(kb+4*s,4)}, {R(vQ[q]+4*s,4)}, {c}"

    def pv(q, sb, kb, s):
        return f"v_smfmac_f32_32x32x32_bf16 {R(vO[q],16)}, {R(kb+8+4*s,4)}, {R(sb+8*s,8)}, v{vIDX}"

    def ls(q, sb, s):
        return f"v_smfmac_f32_16x16x64_bf16 {R(vL[q],4)}, {R(vONES,4)}, {R(sb+8*s,8)}, v{vIDX}"

    def rowmax_tree(s, dst, first):
        if first:
            a(f"v_max3_f32 v{dst}, v{s}, v{s+1}, v{s+2}")
            k = 3
        else:
            k = 0
        while k + 1 < 16:
            a(f"v_max3_f32 v{dst}, v{dst}, v{s+k}, v{s+k+1}")
            k += 2
        if k < 16:
            a(f"v_max_f32 v{dst}, v{dst}, v{s+k}")

    def cfill(q, m, t):
        a(f"v_mov_b32 v{t}, v{m}")
        a("s_nop 1")
        a(f"v_permlane32_swap_b32 v{m}, v{t}")
        a(f"v_min_f32_e64 v{vC[q]}, -v{m}, -v{t}")
        a(f"v_min_f32_e64 v{vC[q]+1}, -v{m}, -v{t}")
        for i in range(2, 16, 2):
            a(f"v_mov_b64 {R(vC[q]+i,2)}, {R(vC[q],2)}")

    for f in range(4):
        a(kvread(0, 0, f))
    a(kvread(1, 1, 0))
    a(f"s_nop {6 - P['qlag'] // 2}")
    for i in range(8):
        a(f"v_cvt_pk_bf16_f32 v{vQ[0]+i}, v{vQA[0]+2*i}, v{vQA[0]+2*i+1}")
    a("s_waitcnt lgkmcnt(3)")
    a("s_nop 0")
    a(qk(0, vS[0], vKVB[0], 0, True))
    a(qk(0, vS[0], vKVB[0], 1))
    for i in range(8):
        a(f"v_cvt_pk_bf16_f32 v{vQ[1]+i}, v{vQA[1]+2*i}, v{vQA[1]+2*i+1}")
    a("s_nop 1")
    a(qk(1, vS[1], vKVB[0], 0, True))
    a(qk(1, vS[1], vKVB[0], 1))
    rowmax_tree(vS[0], 2, True)
    cfill(0, 2, 3)
    a("s_nop 1")
    a(qk(0, vS[0], vKVB[0], 0))
    a(qk(0, vS[0], vKVB[0], 1))
    rowmax_tree(vS[1], 4, True)
    cfill(1, 4, 5)
    stamp()

    def finish_head(q, inter=()):
        inter = list(inter)
        o = vO[q]
        if P["lrows"] == 2:
            a(f"v_mov_b32 v3, v{vL[q]}")
            a("s_nop 1")
            a(f"v_permlane32_swap_b32 v{vL[q]}, v3")
        a(f"v_pk_add_f32 v[2:3], {R(o,2)}, {R(o+2,2)}")
        for i in range(4, 16, 2):
            a(f"v_pk_add_f32 v[2:3], v[2:3], {R(o+i,2)}")
        a(f"v_cmp_nge_f32 vcc, s{sT0}, v{vL[q]}")
        a("v_add_f32 v2, v2, v3")
        a(f"v_cmp_class_f32 s[{sT2}:{sT3}], v2, s{sT1}")
        a(f"s_or_b64 vcc, vcc, s[{sT2}:{sT3}]")
        a("s_nop 0" if (P["dense"] or P["dele"] or P["nosync"]) else f"s_branch L_truemax{q}" if P["force_fb"] else f"s_cbranch_vccnz L_truemax{q}")
        a.label(f"L_norm{q}")
        a(f"v_rcp_f32 v2, v{vL[q]}")
        if inter:
            inter.pop(0)()
        else:
            a("s_nop 0")
        for s in range(2):
            for i in range(8 * s, 8 * s + 8):
                a(f"v_mul_f32 v{o+i}, v2, v{o+i}")
            if inter:
                inter.pop(0)()
            for i in range(4 * s, 4 * s + 4):
                a(f"v_cvt_pk_bf16_f32 v{vOWN+8*q+i}, v{o+2*i}, v{o+2*i+1}")
            for i in range(4 * s, 4 * s + 4):
                a(f"v_min_u32 v{vOWN+8*q+i}, -2, v{vOWN+8*q+i}")
            if inter:
                inter.pop(0)()
        while inter:
            inter.pop(0)()
        for s in range(2):
            f = 2 * q + s
            a(f"buffer_store_dwordx4 {R(vOWN+4*f,4)}, v{vL16}, {D(D_WS)}, s{sOG} offen offset:{f*1024} sc1")
            vm.add("ost")

    vm.q.clear()
    a(f"s_mov_b32 s{sT0}, {hex(f2u(2.0**60))}")
    a(f"s_movk_i32 s{sT1}, 0x207")
    J = P["J"]
    NP = 128 - 2 * J
    T0 = 64 - J
    steps = [(n & 1, n >> 1, n >> 1) for n in range(NP)]
    steps += [(0, T0 + j, T0 + j) for j in range(J)] + [(1, T0 + j, 64 + j) for j in range(J)]
    tile_of = {i: t for (_, t, i) in steps}
    rd1 = {n: [] for n in range(128)}
    rd0 = {n: [] for n in range(128)}
    for n in range(NP - 2):
        t = n >> 1
        if n & 1 == 0:
            rd1[n] = [(t + 1, 1)]; rd0[n] = [(t + 1, 2)]
        else:
            rd1[n] = [(t + 1, 3)]; rd0[n] = [(t + 2, 0)]
    rd1[NP - 2] = [(T0, 1)]; rd0[NP - 2] = [(T0, 2), (T0, 3)]
    for n in range(NP - 1, 128):
        if n + 2 < 128:
            rd1[n] = [(steps[n + 2][2], 0), (steps[n + 2][2], 1)]
        if n >= NP and n + 1 < 128:
            rd0[n] = [(steps[n + 1][2], 2), (steps[n + 1][2], 3)]
    bars = {16 * u - 3 for u in range(1, 7)} | {2 * P["ntile0"] - 3, 109 if J == 8 else 119}
    assert J in (8, 12, 16)
    order = [(0, f) for f in range(4)] + [(g, f) for g in range(1, 16) for f in (0, 1)] + [(g, f) for g in range(1, 16) for f in (2, 3)]

    def freg(y):
        return vOWN + 4 * y if y < 4 else RING[(y - 4) % len(RING)]

    def oload(y):
        g, f = order[y]
        return f"buffer_load_dwordx4 {R(freg(y),4)}, v{vL16}, {D(D_WS)}, s{sOG+g} offen offset:{f*1024} sc1"

    nx = [4]

    def issue_load():
        a(oload(nx[0]))
        vm.add(f"o{nx[0]}")
        nx[0] += 1

    pre = P["pre"]
    pre_at = {}
    for k in range(pre):
        pre_at.setdefault(127 - (pre - 1 - k) // 2, []).append(k)
    assert pre + P["early"] + P["mid"] <= 16 and pre <= 16
    items = []
    for n in range(128):
        q, t, ins = steps[n]
        sb = vS[n & 1]
        so = vS[(n + 1) & 1]
        ex = [("i", f"v_exp_f32 v{sb+i}, v{sb+i}", None) for i in range(16)]
        if P["astamp"] and n in (2, 14, 30, 46, 62, 94, 112, 120):
            items.append(("call", stamp))
        items += ex[0:2]
        if n > 0:
            pq, _, pi_ = steps[n - 1]
            items.append(("i", pv(pq, so, vKVB[pi_ & 1], 1), (pi_, 3)))
        items.append(("w",))
        items += ex[2:5]
        if n > 0:
            items.append(("i", ls(pq, so, 1), None))
        items += [("r",) + r for r in rd1[n]]
        items += ex[5:7]
        if n < 127:
            nq, _, ni = steps[n + 1]
            items.append(("i", qk(nq, so, vKVB[ni & 1], 0), (ni, 0)))
        items += ex[7:10]
        if n < 127:
            items.append(("i", qk(nq, so, vKVB[ni & 1], 1), (ni, 1)))
        items.append(("w",) if n >= NP - 1 else ("i", "s_nop 0", None))
        items += ex[10:13]
        items.append(("i", pv(q, sb, vKVB[ins & 1], 0), (ins, 2)))
        if n in bars:
            items.append(("bar",))
        elif n in pre_at:
            items += [("call", issue_load)] * len(pre_at[n])
            if len(pre_at[n]) < 2:
                items.append(("i", "s_nop 0", None))
        else:
            items.append(("i", "s_nop 1", None))
        items += ex[13:16]
        items.append(("i", ls(q, sb, 0), None))
        if rd0[n]:
            items += [("r",) + r for r in rd0[n]]
        else:
            items.append(("i", "s_nop 0", None))
        if n == 128 - J:
            items.append(("call", lambda: finish_head(0)))
    items.append(("i", "s_nop 0", None))
    items.append(("i", pv(1, vS[1], vKVB[(63 + J) & 1], 1), (63 + J, 3)))
    items.append(("i", ls(1, vS[1], 1), None))
    if P["dense"]:
        import re
        new = []
        for it_ in items:
            if it_[0] == "i":
                m = re.match(r"v_smfmac_f32_32x32x32_bf16 v\[(\d+):\d+\], v\[(\d+):\d+\], v\[(\d+):", it_[1])
                m2 = re.match(r"v_smfmac_f32_16x16x64_bf16 v\[(\d+):\d+\], v\[(\d+):\d+\], v\[(\d+):", it_[1])
                if m:
                    d, v_, b_ = map(int, m.groups())
                    pb = 224 + (b_ - 16) // 2
                    cv = [("i", f"v_cvt_pk_bf16_f32 v{pb+i}, v{b_+2*i}, v{b_+2*i+1}", None) for i in range(4)]
                    k = len(new)
                    c = 0
                    while c < 2:
                        k -= 1
                        if new[k][0] == "i" and new[k][1].startswith("v_exp"):
                            c += 1
                    new[k:k] = cv
                    new.append(("i", f"v_mfma_f32_32x32x16_bf16 {R(d,16)}, {R(v_,4)}, {R(pb,4)}, {R(d,16)}", it_[2]))
                    continue
                if m2:
                    d, o_, b_ = map(int, m2.groups())
                    if b_ & 8:
                        pb = 224 + (b_ - 8 - 16) // 2
                        new.append(("i", f"v_smfmac_f32_16x16x64_bf16 {R(d,4)}, {R(o_,4)}, {R(pb,8)}, v{vIDX}", None))
                    continue
            new.append(it_)
        for k in range(len(new)):
            if new[k][0] == "r" and new[k-1][0] == "i" and new[k-1][1].startswith("v_exp"):
                j_ = k - 1
                while not (new[j_][0] == "i" and "mfma" in new[j_][1]) and new[j_][0] != "bar":
                    j_ -= 1
                new.insert(j_ + 1, new.pop(k))
        items = new
    issued = [(0, 2), (0, 3), (1, 0)]
    content = {(0, 0): (0, 0), (0, 1): (0, 1)}
    for k, it_ in enumerate(items):
        if it_[0] == "i":
            if it_[2] is not None:
                ins, f = it_[2]
                assert content.get((ins & 1, f)) == (ins, f), (k, it_, content.get((ins & 1, f)))
            a(it_[1])
        elif it_[0] == "r":
            _, ins, f = it_
            content.pop((ins & 1, f), None)
            issued.append((ins, f))
            assert len(issued) <= 15
            a(kvread(ins, tile_of[ins], f))
        elif it_[0] == "call":
            it_[1]()
        else:
            if it_[0] == "bar":
                keep = 0
            else:
                needs = []
                for j in range(k + 1, len(items)):
                    if items[j][0] in ("w", "bar"):
                        break
                    if items[j][0] == "i" and items[j][2] is not None:
                        needs.append(items[j][2])
                pos = [issued.index(x) for x in needs if x in issued]
                keep = len(issued) - 1 - max(pos) if pos else None
            if keep is None:
                a("s_nop 0")
            else:
                a(f"s_waitcnt lgkmcnt({keep})")
                for (ins, f) in issued[: len(issued) - keep]:
                    content[(ins & 1, f)] = (ins, f)
                del issued[: len(issued) - keep]
            if it_[0] == "bar":
                a("s_barrier")
    stamp()
    def wo_reads(y):
        g, f = order[y]
        return [f"ds_read_b64_tr_b16 {R(vWF + 8*(y&3) + 4*T + 2*u, 2)}, v{vWR[T + 2*(g>>3)]} offset:{(g&7)*8192 + f*2048 + u*1024}"
                for T in range(2) for u in range(2)]

    def omf(y, T):
        c = "0" if y == 0 else R(vACC[T], 16)
        return f"v_mfma_f32_32x32x16_bf16 {R(vACC[T],16)}, {R(vWF + 8*(y&3) + 4*T, 4)}, {R(freg(y),4)}, {c}"

    def chk(y):
        f = freg(y)
        if y & 3 == 0:
            return [f"v_max_u32 v{vMX}, v{f}, v{f+1}", f"v_max3_u32 v{vMX}, v{vMX}, v{f+2}, v{f+3}"]
        return [f"v_max3_u32 v{vMX}, v{vMX}, v{f}, v{f+1}", f"v_max3_u32 v{vMX}, v{vMX}, v{f+2}, v{f+3}"]

    for _ in range(P["early"]):
        issue_load()
    if P["early"] < 12:
        a(f"s_nop {11 - P['early']}")
    finish_head(1, [issue_load] * P["mid"])
    if P["estamp"]:
        stamp()
    WLA = P["wla"]
    for y in range(WLA):
        for t in wo_reads(y):
            a(t)
    CK = 5
    pend = None
    for y in range(64):
        rd = wo_reads(y + WLA) if y + WLA < 64 else []
        ck = chk(y + CK) if y + CK < 64 else []
        if y < 3:
            ck = [] if y < 2 else chk(4) + chk(5) + chk(6) + chk(7)
        if P["estamp"] and y in (4, 20, 36, 48):
            stamp()
        a(f"s_waitcnt lgkmcnt({4 * min(WLA - 1, 63 - y)})")
        a(omf(y, 0))
        if nx[0] < 64 and nx[0] <= y + 4 + P["la"]:
            issue_load()
        for t in rd[:2]:
            a(t)
        a(omf(y, 1))
        if nx[0] < 64 and nx[0] <= y + 4 + P["la"]:
            issue_load()
        if y == P["bar8"]:
            a("s_barrier")
        if pend:
            a(f"s_cbranch_vccnz L_retry{pend}")
            a.label(f"L_ok{pend}")
            pend = None
        for t in rd[2:]:
            a(t)
        if ck:
            vm.wait(f"o{y+CK}")
            for t in ck:
                a(t)
            if (y + CK) & 3 == 3:
                pend = (y + CK) >> 2
                a(f"v_cmp_eq_u32 vcc, -1, v{vMX}")
    assert nx[0] == 64
    stamp()
    a("s_nop 10")
    PK = 48
    for T in range(2):
        for z in range(2):
            for m in range(4 * z, 4 * z + 4):
                a(f"v_cvt_pk_bf16_f32 v{PK+8*T+m}, v{vACC[T]+2*m}, v{vACC[T]+2*m+1}")
            if T or z:
                a(f"v_xor_b32 v2, {16*(2*T+z)}, v{vTW}")
            a(f"ds_write_b128 v{2 if (T or z) else vTW}, {R(PK+8*T+4*z,4)}")
    a("s_waitcnt lgkmcnt(0)")
    for j in range(4):
        a(f"ds_read_b128 {R(64+4*j,4)}, v{vTR} offset:{j*1024}")
    pol = (" " + P["outpol"]) if P["outpol"] else ""
    for j in range(4):
        a(f"s_waitcnt lgkmcnt({3-j})")
        a(f"buffer_store_dwordx4 {R(64+4*j,4)}, v{vOUT}, {D(D_OUT)}, s{sOUTB} offen{pol}")
        if j < 3:
            a(f"s_add_u32 s{sOUTB}, s{sOUTB}, 16384")
    if P["diag"]:
        a("s_waitcnt vmcnt(0)")
        stamp()
        assert nst[0] <= 15
        a(f"s_add_u32 s{sW}, s{sW}, 1")
        stamp_out(f"s{sW}")
    a("s_endpgm")
    a.label("L_rare")

    a.label("L_spin")
    a(f"buffer_load_dword v{vPOLL}, v{vL4}, {D(D_DBG)}, 0 offen sc1")
    a(f"s_add_u32 s{sSPIN}, s{sSPIN}, {1024 if P['diag'] else 1}")
    a(f"s_cmp_gt_u32 s{sSPIN}, 0x400000")
    a("s_waitcnt vmcnt(0)")
    a("s_cbranch_scc1 L_spun")
    a(f"v_cmp_gt_u32 vcc, 4, v{vPOLL}")
    a("s_cbranch_vccnz L_spin")
    a("s_branch L_spun")
    for i in range(1, 16):
        a.label(f"L_retry{i}")
        for y in range(4 * i, 4 * i + 4):
            a(oload(y))
        a(f"s_add_u32 s{sSPIN}, s{sSPIN}, 1")
        a(f"s_cmp_gt_u32 s{sSPIN}, 0x400000")
        a("s_waitcnt vmcnt(0)")
        a(f"s_cbranch_scc1 L_ok{i}")
        for y in range(4 * i, 4 * i + 4):
            for t in chk(y):
                a(t)
        a(f"v_cmp_eq_u32 vcc, -1, v{vMX}")
        a(f"s_cbranch_vccnz L_retry{i}")
        a(f"s_branch L_ok{i}")
    for q in range(2):
        sb, kb = (192, 208) if q == 0 else (vS[0], vKVB[0])
        a.label(f"L_truemax{q}")
        a("v_mov_b32 v2, 0xff800000")
        a(f"s_mov_b32 s{sCNT}, 0")
        a.label(f"L_tm1{q}")
        for f in range(2):
            a(f"buffer_load_dwordx4 {R(kb+4*f,4)}, v{vL16}, {D(D_WS)}, s{sCNT} offen offset:{f*1024} sc1")
        a("s_waitcnt vmcnt(0)")
        a(qk(q, sb, kb, 0, True)); a(qk(q, sb, kb, 1))
        a("s_nop 15")
        rowmax_tree(sb, 2, False)
        a(f"s_add_u32 s{sCNT}, s{sCNT}, 4096")
        a(f"s_cmp_lt_u32 s{sCNT}, {64*4096}")
        a(f"s_cbranch_scc1 L_tm1{q}")
        cfill(q, 2, 3)
        for i in range(16):
            a(f"v_mov_b32 v{vO[q]+i}, 0")
        for i in range(4):
            a(f"v_mov_b32 v{vL[q]+i}, 0")
        a(f"s_mov_b32 s{sCNT}, 0")
        a.label(f"L_tm2{q}")
        for f in range(4):
            a(f"buffer_load_dwordx4 {R(kb+4*f,4)}, v{vL16}, {D(D_WS)}, s{sCNT} offen offset:{f*1024} sc1")
        a("s_waitcnt vmcnt(0)")
        a(qk(q, sb, kb, 0)); a(qk(q, sb, kb, 1))
        a("s_nop 15")
        for i in range(16):
            a(f"v_exp_f32 v{sb+i}, v{sb+i}")
        a("s_nop 1")
        for s in range(2):
            a(pv(q, sb, kb, s)); a(ls(q, sb, s))
        a(f"s_add_u32 s{sCNT}, s{sCNT}, 4096")
        a(f"s_cmp_lt_u32 s{sCNT}, {64*4096}")
        a("s_nop 15")
        a(f"s_cbranch_scc1 L_tm2{q}")
        if P["lrows"] == 2:
            a(f"v_mov_b32 v3, v{vL[q]}")
            a("s_nop 1")
            a(f"v_permlane32_swap_b32 v{vL[q]}, v3")
        a(f"s_branch L_norm{q}")
    a.label("L_end")
    a("s_endpgm")

    if P["dele"]:
        L = a.lines
        q0 = L.index("L_kvdone:"); q1 = max(i for i, l in enumerate(L) if l.startswith("v_mfma") and f"v[{vQA[1]}:" in l.split(",")[0] and i < L.index("L_norm0:"))
        a1 = L.index("L_norm1:"); e1 = L.index("L_rare:")
        new = []
        for i, l in enumerate(L):
            d = P["dele"]
            if q0 < i <= q1 and ((d & 1 and l.startswith("v_mfma") and not l.endswith(", 0")) or (d & 2 and l.startswith("ds_read") and i > q0 + 60)):
                continue
            if q1 + 60 < i < a1 and d & 4 and l.startswith("ds_read"):
                new.append("s_nop 0"); continue
            if a1 < i < e1 and ((d & 8 and l.startswith("v_mfma") and not l.endswith(", 0")) or (d & 16 and l.startswith("ds_read_b64_tr") and i > a1 + 120)):
                continue
            new.append(l)
        a.lines = new
    if P["g16"]:
        import re
        new = []
        cnt = {}
        for l in a.lines:
            m = re.match(r"v_mfma_f32_32x32x16_bf16 v\[(\d+):\d+\], v\[(\d+):\d+\], v\[(\d+):\d+\], (.*)", l)
            if m:
                d, A, B = int(m.group(1)), int(m.group(2)), int(m.group(3))
                isq = d in vQA and not (80 <= B < 96)
                iso = d in vACC and vWF <= A < vWF + 32 and not (80 <= B < 96 and A < 128 and "L_norm1:" not in new)
                if (isq and P["g16"] & 1) or (iso and "L_norm1:" in new and P["g16"] & 2):
                    k = cnt.get(d, 0); cnt[d] = k + 1
                    for h in range(2):
                        dd = d + 8 * (k & 1) + 4 * h
                        c = "0" if k < 2 else R(dd, 4)
                        new.append(f"v_mfma_f32_16x16x32_bf16 {R(dd,4)}, {R(A ^ (4*h),4)}, {R(B,4)}, {c}")
                    continue
            new.append(l)
        a.lines = new
    if P["stubs"]:
        plant_stubs(a)
    bad = a.check()
    for b in bad[:8]:
        print("HAZARD", b, file=sys.stderr)
    assert not bad or P["dense"] or P["g16"] or P["dele"], f"{len(bad)} hazards"

    head = open(os.path.join(os.path.dirname(os.path.abspath(__file__)), "..", "cdna_kernels", "standalone__grouped_kv_mqa__prompt.s.ref")).read().split("\n")
    hdr = [l for l in head if l.startswith(";") and "@launch" not in l and "Override" not in l and "grid=ceil" not in l]
    out = "\n".join(hdr) + f"\n; @launch grid=(256,1,1) block=(320,1,1) lds={LDS_BYTES}\n"
    out += f""".amdgcn_target "amdgcn-amd-amdhsa--gfx950"
.text
.globl {NAME}
.p2align 8
.type {NAME},@function
{NAME}:
"""
    out += a.text()
    out += f""".section .rodata,"a"
.p2align 6
.amdhsa_kernel {NAME}
  .amdhsa_next_free_vgpr 256
  .amdhsa_next_free_sgpr 102
  .amdhsa_accum_offset 256
  .amdhsa_group_segment_fixed_size 0
  .amdhsa_kernarg_size 64
  .amdhsa_user_sgpr_count 2
  .amdhsa_user_sgpr_kernarg_segment_ptr 1
  .amdhsa_system_sgpr_workgroup_id_x 1
.end_amdhsa_kernel
"""
    return out


if __name__ == "__main__":
    path = sys.argv[1]
    kw = {}
    for arg in sys.argv[2:]:
        k, v = arg.split("=")
        if k in ("mode", "outpol"):
            kw[k] = v.replace("+", " ")
        elif k == "skip":
            kw[k] = tuple(int(x) for x in v.split(",") if x)
        else:
            kw[k] = int(v)
    open(path, "w").write(gen(**kw))
```

```python
import sys, os, subprocess, struct, json
sys.path.insert(0, "cdna_kernels")
import numpy as np
import cdna_launch as cl

HDR = '.amdgcn_target "amdgcn-amd-amdhsa--gfx950"\n.text\n'

def kernel_text(name, body, iters, pre="", vgpr=256, accum=256):
    return f"""
.globl {name}
.p2align 8
.type {name},@function
{name}:
    s_load_dwordx2 s[4:5], s[0:1], 0
    s_load_dwordx2 s[20:21], s[0:1], 8
    s_waitcnt lgkmcnt(0)
    s_mov_b32 s8, s4
    s_mov_b32 s9, s5
    s_mov_b32 s10, 0x100000
    s_mov_b32 s11, 0x00020000
    s_mov_b32 s24, s20
    s_mov_b32 s25, s21
    s_mov_b32 s26, 0x1000000
    s_mov_b32 s27, 0x00020000
    v_mov_b32 v255, v0
{pre}
    s_mov_b32 s12, {iters}
    s_barrier
    s_memtime s[14:15]
    s_waitcnt lgkmcnt(0)
.p2align 6
L_{name}:
{body}
    s_sub_u32 s12, s12, 1
    s_cmp_lg_u32 s12, 0
    s_cbranch_scc1 L_{name}
    s_waitcnt vmcnt(0) lgkmcnt(0)
    s_memtime s[16:17]
    s_waitcnt lgkmcnt(0)
    s_sub_u32 s16, s16, s14
    s_nop 7
    s_nop 7
    v_lshrrev_b32 v1, 6, v255
    s_lshl_b32 s3, s2, 4
    v_add_u32 v1, s3, v1
    v_lshlrev_b32 v1, 2, v1
    v_mov_b32 v2, s16
    buffer_store_dword v2, v1, s[8:11], 0 offen
    s_waitcnt vmcnt(0)
    s_endpgm
"""

def kd(name, vgpr=256, accum=256):
    return f"""
.section .rodata,"a"
.p2align 6
.amdhsa_kernel {name}
  .amdhsa_next_free_vgpr {vgpr}
  .amdhsa_next_free_sgpr 102
  .amdhsa_accum_offset {accum}
  .amdhsa_group_segment_fixed_size 0
  .amdhsa_kernarg_size 16
  .amdhsa_user_sgpr_count 2
  .amdhsa_user_sgpr_kernarg_segment_ptr 1
  .amdhsa_system_sgpr_workgroup_id_x 1
.end_amdhsa_kernel
.text
"""

def meta(names, vgprs):
    s = ".amdgpu_metadata\n---\namdhsa.version: [1, 2]\namdhsa.kernels:\n"
    for n, v in zip(names, vgprs):
        s += f"""  - .name: {n}
    .symbol: {n}.kd
    .kernarg_segment_size: 16
    .kernarg_segment_align: 8
    .group_segment_fixed_size: 0
    .private_segment_fixed_size: 0
    .wavefront_size: 64
    .sgpr_count: 102
    .vgpr_count: {v}
    .max_flat_workgroup_size: 1024
    .args:
      - {{.name: kernargs, .size: 16, .offset: 0, .value_kind: by_value}}
"""
    s += "...\n.end_amdgpu_metadata\n"
    return s

def build(tests, path):
    s = HDR
    for t in tests:
        txt = kernel_text(t["name"], t["body"], t["iters"], t.get("pre", ""))
        v = t.get("vgpr", 256)
        acc = t.get("accum", min(v, 256))
        if acc < 256:
            txt = txt.replace("v255", f"v{acc-1}")
        s += txt
    for t in tests:
        v = t.get("vgpr", 256)
        s += kd(t["name"], v, t.get("accum", min(v, 256)))
    s += meta([t["name"] for t in tests], [t.get("vgpr", 256) for t in tests])
    open(path + ".s", "w").write(s)
    r = subprocess.run(["clang", "-x", "assembler", "-target", "amdgcn-amd-amdhsa", "-mcpu=gfx950",
                        path + ".s", "-o", path + ".co"], capture_output=True, text=True)
    if r.returncode:
        print(r.stderr[:1500])
        sys.exit(1)

def run(tests, path):
    out = cl.DeviceBuffer(1 << 20)
    rng = np.random.default_rng(0)
    data = (rng.standard_normal(1 << 22).astype(np.float32))
    inp = cl.DeviceBuffer.from_numpy(data)
    for t in tests:
        k = cl.AsmKernel(path + ".co", t["name"], check=False)
        for (grid, block, lds) in t["launches"]:
            res = []
            for rep in range(3):
                cl.hip_check(cl._hip.hipMemset(out._ptr, 0, 1 << 20))
                k.launch((grid, 1, 1), (block, 1, 1), cl.pack_ptr_kernargs([out.ptr, inp.ptr]), lds)
                cl.hip_check(cl._hip.hipDeviceSynchronize())
                o = out.to_numpy(np.uint32, (grid, 16))[:, : block // 64]
                res.append(o)
            o = res[-1].astype(np.float64) / t["iters"]
            print(f"{t['name']:28s} grid={grid:4d} waves/WG={block//64:2d} lds={lds:6d}: cyc/iter min {o.min():9.2f} med {np.median(o):9.2f} max {o.max():9.2f}  | max/wps/n {o.max()/max(1,(block//256))/t.get('n',1):9.3f}", flush=True)
        k.unload()
```

```python
import sys
from ubrun import *
L = [(256, 256, 0)]
init = "\n".join(f"    v_mov_b32 v{i}, 0" for i in range(2, 127))
tests = []
def r(a,n,p="v"): return f"{p}[{a}:{a+n-1}]" if n>1 else f"{p}{a}"
def ex(S,i): return f"    v_exp_f32 v{S+i}, v{S+i}"
def mk(name, inst, dn, A, an, B, bn, idx, mods="", nexp=5):
    lines=[]
    for i in range(8):
        lines.append(f"    {inst} {r(2+16*(i%2), dn)}, {r(A,an)}, {r(B,bn)}, {idx} {mods}")
        lines += [ex(100,j) for j in range(nexp)]
    tests.append(dict(name=name, body="\n".join(["\n".join(lines)]*4), n=32, iters=500, pre=init, vgpr=128, launches=L))
for nm, idx in (("sep","v98"),("sepodd","v99"),("A0","v70"),("A1","v71"),("A3","v73"),("B0","v80"),("B7","v87"),("adjA","v74"),("adjB","v88")):
    mk("s16_"+nm, "v_smfmac_f32_16x16x64_bf16", 4, 70, 4, 80, 8, idx)
mk("s16_AinB", "v_smfmac_f32_16x16x64_bf16", 4, 80, 4, 80, 8, "v98")
mk("s16_allB", "v_smfmac_f32_16x16x64_bf16", 4, 80, 4, 80, 8, "v80")
mk("s16_cbsz", "v_smfmac_f32_16x16x64_bf16", 4, 70, 4, 80, 8, "v98", "cbsz:1 abid:1")
mk("d32_AB", "v_mfma_f32_32x32x16_bf16", 16, 70, 4, 70, 4, "0")
mk("d32_cbsz", "v_mfma_f32_32x32x16_bf16", 16, 70, 4, 80, 4, "0", "cbsz:1 abid:0")
mk("s16i8", "v_smfmac_i32_16x16x128_i8", 4, 70, 4, 80, 8, "v98")
mk("f4", "v_mfma_f32_16x16x128_f8f6f4", 4, 70, 4, 80, 8, "0", "cbsz:4 blgp:1")
mk("f4b", "v_mfma_f32_32x32x64_f8f6f4", 16, 70, 4, 80, 8, "0", "cbsz:4 blgp:1", nexp=9)
if __name__ == "__main__":
    if sys.argv[1] == "build": build(tests, "ub10")
    else: run(tests, "ub10")
```

```python
import sys, os, subprocess, struct, ctypes
sys.path.insert(0, "cdna_kernels")
import numpy as np
import cdna_launch as cl
from ubrun import HDR

def kd(name, vgpr=256, accum=256, nptr=4):
    return f"""
.section .rodata,"a"
.p2align 6
.amdhsa_kernel {name}
  .amdhsa_next_free_vgpr {vgpr}
  .amdhsa_next_free_sgpr 102
  .amdhsa_accum_offset {accum}
  .amdhsa_group_segment_fixed_size 0
  .amdhsa_kernarg_size {nptr*8}
  .amdhsa_user_sgpr_count 2
  .amdhsa_user_sgpr_kernarg_segment_ptr 1
  .amdhsa_system_sgpr_workgroup_id_x 1
.end_amdhsa_kernel
.text
"""
def meta(names, vgprs, nptr=4):
    s = ".amdgpu_metadata\n---\namdhsa.version: [1, 2]\namdhsa.kernels:\n"
    for n, v in zip(names, vgprs):
        s += f"""  - .name: {n}
    .symbol: {n}.kd
    .kernarg_segment_size: {nptr*8}
    .kernarg_segment_align: 8
    .group_segment_fixed_size: 0
    .private_segment_fixed_size: 0
    .wavefront_size: 64
    .sgpr_count: 102
    .vgpr_count: {v}
    .max_flat_workgroup_size: 1024
    .args:
      - {{.name: kernargs, .size: {nptr*8}, .offset: 0, .value_kind: by_value}}
"""
    return s + "...\n.end_amdgpu_metadata\n"

def wrap(name, body):
    return f"""
.globl {name}
.p2align 8
.type {name},@function
{name}:
    s_memrealtime s[40:41]
    s_memtime s[44:45]
    s_load_dwordx4 s[4:7], s[0:1], 0
    s_load_dwordx4 s[20:23], s[0:1], 16
    s_waitcnt lgkmcnt(0)
    s_memtime s[48:49]
    s_mov_b32 s8, s4
    s_mov_b32 s9, s5
    s_mov_b32 s10, 0x100000
    s_mov_b32 s11, 0x00020000
    s_mov_b32 s12, s6
    s_mov_b32 s13, s7
    s_mov_b32 s14, 0x400000
    s_mov_b32 s15, 0x00020000
    s_mov_b32 s16, s20
    s_mov_b32 s17, s21
    s_mov_b32 s18, 0x400000
    s_mov_b32 s19, 0x00020000
    s_mov_b32 s24, s22
    s_mov_b32 s25, s23
    s_mov_b32 s26, 0x1000000
    s_mov_b32 s27, 0x00020000
    s_waitcnt lgkmcnt(0)
{body}
    s_waitcnt vmcnt(0) lgkmcnt(0)
    s_barrier
    s_memrealtime s[42:43]
    s_memtime s[46:47]
    s_getreg_b32 s52, hwreg(HW_REG_XCC_ID)
    s_waitcnt lgkmcnt(0)
    s_sub_u32 s46, s46, s44
    s_sub_u32 s48, s48, s44
    s_sub_u32 s50, s50, s44
    s_lshl_b32 s3, s2, 5
    v_mov_b32 v1, s3
    v_mov_b32 v4, s40
    v_mov_b32 v5, s42
    v_mov_b32 v6, s46
    v_mov_b32 v7, s48
    v_mov_b32 v8, s50
    v_mov_b32 v9, s52
    buffer_store_dwordx4 v[4:7], v1, s[8:11], 0 offen
    buffer_store_dwordx2 v[8:9], v1, s[8:11], 0 offen offset:16
    s_waitcnt vmcnt(0)
    s_endpgm
"""
def build(tests, path):
    s = HDR
    tests = tests + [dict(name="evict", body="    s_memtime s[50:51]\n" + "\n".join(f"    v_add_f32_e64 v{2+i%16}, v{20+i%16}, v40" for i in range(20000)))]
    for t in tests: s += wrap(t["name"], t["body"])
    for t in tests:
        v = t.get("vgpr", 256)
        s += kd(t["name"], v, t.get("accum", min(v, 256)))
    s += meta([t["name"] for t in tests], [t.get("vgpr", 256) for t in tests])
    open(path + ".s", "w").write(s)
    r = subprocess.run(["clang", "-x", "assembler", "-target", "amdgcn-amd-amdhsa", "-mcpu=gfx950",
                        path + ".s", "-o", path + ".co"], capture_output=True, text=True)
    if r.returncode:
        print(r.stderr[:1500]); sys.exit(1)

def run(tests, path, modes=("cold", "mall", "warm"), reps=7):
    out = cl.DeviceBuffer(1 << 20)
    rng = np.random.default_rng(0)
    x0 = cl.DeviceBuffer.from_numpy(rng.integers(0, 2**31, 1 << 20).astype(np.uint32))
    w0 = cl.DeviceBuffer.from_numpy(rng.integers(0, 2**31, 1 << 20).astype(np.uint32))
    x = cl.DeviceBuffer(4 << 20); w = cl.DeviceBuffer(4 << 20)
    ws = cl.DeviceBuffer(16 << 20)
    big = cl.DeviceBuffer(512 << 20)
    H = cl._hip
    if "clean" in modes:
        import torch
        tbig = torch.zeros(128 << 20, dtype=torch.int32, device="cuda")
    ev = cl.AsmKernel(path + ".co", "evict", check=False)
    for t in tests:
        k = cl.AsmKernel(path + ".co", t["name"], check=False)
        grid, block, lds = t["launch"]
        for mode in modes:
            rows = []; byhp = []
            for rep in range(reps):
                if mode != "warm":
                    ev.launch((256, 1, 1), (64, 1, 1), cl.pack_ptr_kernargs([out.ptr, x.ptr, w.ptr, ws.ptr]), 100*1024)
                    cl.hip_check(H.hipDeviceSynchronize())
                if mode == "cold":
                    cl.hip_check(H.hipMemcpy(x._ptr, x0._ptr, 4 << 20, 3)); cl.hip_check(H.hipMemcpy(w._ptr, w0._ptr, 4 << 20, 3))
                    cl.hip_check(H.hipMemset(big._ptr, rep, 512 << 20))
                elif mode == "clean":
                    cl.hip_check(H.hipMemcpy(x._ptr, x0._ptr, 4 << 20, 3)); cl.hip_check(H.hipMemcpy(w._ptr, w0._ptr, 4 << 20, 3))
                    cl.hip_check(H.hipMemset(big._ptr, rep, 512 << 20)); H.hipDeviceSynchronize()
                    tbig.sum(); torch.cuda.synchronize()
                elif mode == "mall":
                    cl.hip_check(H.hipMemset(big._ptr, rep, 64 << 20))
                    cl.hip_check(H.hipMemcpy(x._ptr, x0._ptr, 4 << 20, 3)); cl.hip_check(H.hipMemcpy(w._ptr, w0._ptr, 4 << 20, 3))
                cl.hip_check(H.hipMemset(ws._ptr, 0, 4096))
                cl.hip_check(H.hipDeviceSynchronize())
                k.launch((grid, 1, 1), (block, 1, 1), cl.pack_ptr_kernargs([out.ptr, x.ptr, w.ptr, ws.ptr]), lds)
                cl.hip_check(H.hipDeviceSynchronize())
                o = out.to_numpy(np.uint32, (grid, 8)).astype(np.int64)
                t0 = o[:, 0].min()
                byhp.append(np.median(o[:, 2].reshape(2, 16, 8), axis=(0, 2)))
                rows.append([(o[:, 1].max() - t0) / 100.0, (o[:, 0].max() - t0) / 100.0, np.median(o[:, 2]), o[:, 2].max(), np.median(o[:, 3]), np.median(o[:, 4]),
                             np.median(o[:, 2] / np.maximum(1, (o[:, 1] - o[:, 0])) / 10.0)])
            rows = np.array(rows)
            m = np.median(rows, axis=0)
            print(f"{t['name']:22s} {mode:5s} total {m[0]:6.2f}us startskew {m[1]:5.2f}us  cyc med {m[2]:7.0f} max {m[3]:7.0f}  kernarg {m[4]:5.0f} mark {m[5]:6.0f} clk {m[6]:.2f}GHz  (tot min {rows[:,0].min():.2f} max {rows[:,0].max():.2f})", flush=True)
            if t.get("byhp"):
                print("    by hp:", " ".join(f"{v:5.0f}" for v in np.median(np.array(byhp), axis=0)))
        if t.get("showxcc"):
            print("xcc:", (o[:16, 5] & 0xf).tolist())
        k.unload()
```

```python
import sys, subprocess
sys.path.insert(0, "cdna_kernels")
import numpy as np
import cdna_launch as cl
from ubrun import HDR
from mb import kd, meta
def r(a,n): return f"v[{a}:{a+n-1}]"
def kern(name, seq, iters=12, nexp=0):
    s = f"""
.globl {name}
.p2align 8
.type {name},@function
{name}:
    s_load_dwordx4 s[4:7], s[0:1], 0
    s_waitcnt lgkmcnt(0)
    s_mov_b32 s8, s4
    s_mov_b32 s9, s5
    s_mov_b32 s10, 0x100000
    s_mov_b32 s11, 0x00020000
    s_mov_b32 s12, s6
    s_mov_b32 s13, s7
    s_mov_b32 s14, 0x1000000
    s_mov_b32 s15, 0x00020000
    v_lshlrev_b32 v1, 4, v0
    s_lshl_b32 s3, s2, 12
"""
    for i in range(32):
        s += f"    s_add_u32 s20, s3, {i*65536*4}\n    buffer_load_dwordx4 {r(64+4*i,4)}, v1, s[12:15], s20 offen\n"
    s += "".join(f"    v_mov_b32 v{i}, 0\n" for i in list(range(2,64))+list(range(192,256)))
    s += f"""    v_mov_b32 v2, 0xdddddddd
    s_waitcnt vmcnt(0)
    s_barrier
    s_mov_b32 s21, {iters}
    s_memrealtime s[40:41]
    s_memtime s[44:45]
    s_waitcnt lgkmcnt(0)
L_{name}:
"""
    s += "\n".join("    " + x for x in seq) + f"""
    s_sub_u32 s21, s21, 1
    s_cmp_lg_u32 s21, 0
    s_cbranch_scc1 L_{name}
    s_memrealtime s[42:43]
    s_memtime s[46:47]
    s_waitcnt lgkmcnt(0)
    s_sub_u32 s42, s42, s40
    s_sub_u32 s46, s46, s44
    s_nop 15
    v_lshrrev_b32 v3, 6, v0
    s_lshl_b32 s3, s2, 2
    v_add_u32 v3, s3, v3
    v_lshlrev_b32 v3, 3, v3
    v_mov_b32 v4, s42
    v_mov_b32 v5, s46
    buffer_store_dwordx2 v[4:5], v3, s[8:11], 0 offen
    s_waitcnt vmcnt(0)
    s_endpgm
"""
    return s
ACC = [192, 208, 224, 240]
A = lambda i: 64 + 4*(i % 16)
B = lambda i: 128 + 4*(i % 16)
B8 = lambda i: 128 + 8*(i % 8)
def d(acc, a, b, c=None): return f"v_mfma_f32_32x32x16_bf16 {r(acc,16)}, {r(a,4)}, {r(b,4)}, {c or r(acc,16)}"
def sp(acc, a, b): return f"v_smfmac_f32_32x32x32_bf16 {r(acc,16)}, {r(a,4)}, {r(b,8)}, v2"
def d16(acc, a, b): return f"v_mfma_f32_16x16x32_bf16 {r(acc,4)}, {r(a,4)}, {r(b,4)}, {r(acc,4)}"
N = 64
K = {
 "alt": [d(ACC[i%4], A(i), B(i*7+3)) for i in range(N)],
 "chain2": [d(ACC[(i//2)%4], A(i), B(i*7+3)) for i in range(N)],
 "chainall": [d(ACC[0], A(i), B(i*7+3)) for i in range(N)],
 "sameA": [d(ACC[i%4], A(i//2), B(i*7+3)) for i in range(N)],
 "sameB": [d(ACC[i%4], A(i), B(i//2)) for i in range(N)],
 "sameAB": [d(ACC[i%4], A(0), B(0)) for i in range(N)],
 "czero": [d(ACC[i%4], A(i), B(i*7+3), "0") for i in range(N)],
 "qk": [d(ACC[(i//2)%4], A(i), B(i%4), "0" if i%2==0 else None) for i in range(N)],
 "sp_alt": [sp(ACC[i%4], A(i), B8(i*3+1)) for i in range(N)],
 "sp_chain2": [sp(ACC[(i//2)%4], A(i), B8(i*3+1)) for i in range(N)],
 "sp_sameA": [sp(ACC[i%4], A(i//2), B8(i*3+1)) for i in range(N)],
 "d16": [d16(192+4*(i%16), A(i), B(i*7+3)) for i in range(2*N)],
}
if sys.argv[1] == "build":
    s = HDR + "".join(kern(n, a) for n, a in K.items()) + "".join(kd(n, 256, 256) for n in K) + meta(list(K), [256]*len(K))
    open("pw.s","w").write(s)
    rr = subprocess.run(["clang", "-x", "assembler", "-target", "amdgcn-amd-amdhsa", "-mcpu=gfx950","pw.s", "-o", "pw.co"], capture_output=True, text=True)
    print(rr.stderr[:1500])
else:
    H = cl._hip
    out = cl.DeviceBuffer(1<<20)
    rng = np.random.default_rng(0)
    data = (rng.standard_normal(8<<20).astype(np.float32).view(np.uint32) >> 16).astype(np.uint16)
    din = cl.DeviceBuffer.from_numpy(data)
    ks = {n: cl.AsmKernel("pw.co", n, check=False) for n in K}
    res = {n: [] for n in K}
    for rep in range(25):
        for n in K:
            ks[n].launch((256,1,1),(256,1,1), cl.pack_ptr_kernargs([out.ptr, din.ptr, 0, 0]), 100*1024)
            cl.hip_check(H.hipDeviceSynchronize())
            o = out.to_numpy(np.uint32, (1024,2)).astype(np.float64)
            res[n].append([o[:,0].mean()/100, o[:,1].mean()])
    for n in K:
        m = np.median(np.array(res[n]), axis=0); print(f"{n:10s} {m[0]:.2f}us {m[1]:.0f}cyc {m[1]/m[0]/1000:.3f}GHz")
```
